```python
import torch

def _softmax(x, axis=-1):
    return torch.softmax(x, dim=axis)
def _gelu(x):
    return torch.nn.functional.gelu(x, approximate="tanh")
def _silu(x):
    return torch.nn.functional.silu(x)
def _sigmoid(x):
    return torch.sigmoid(x)
def _layernorm(x, axis=-1, eps=1e-5):
    m = x.mean(dim=axis, keepdim=True)
    v = x.var(dim=axis, keepdim=True, unbiased=False)
    return (x - m) / torch.sqrt(v + eps)
def _scatter_add(tgt, idx, src, axis=0):
    return tgt.clone().index_add_(axis, idx, src)
def _segment_sum(src, seg, n):
    out = torch.zeros((n,) + src.shape[1:], dtype=src.dtype)
    return out.index_add_(0, seg, src)
def _pad(x, pw):
    flat = tuple(v for pair in reversed(pw) for v in pair)
    return torch.nn.functional.pad(x, flat)

kernel_name = 'parallel_sum__sliding_local_dilated__glu_gated_bilinear__prompt'

def setup_inputs():

    _w = (lambda a: (lambda t: t.to(torch.bfloat16) if t.is_floating_point() else t)(torch.as_tensor(a)))
    def _A_setup():
        B, S, D = 1, 2048, 512
        return {
            "x": _w((lambda *s: torch.randn(*s, dtype=torch.bfloat16) * 0.05)(B, S, D)),
            "wqkv": _w((lambda *s: torch.randn(*s, dtype=torch.bfloat16) * 0.05)(D, 3 * D)),
            "wo": _w((lambda *s: torch.randn(*s, dtype=torch.bfloat16) * 0.05)(D, D)),
        }
    _A_in = _A_setup()

    def _B_setup():
        B, S, D, F = 1, 2048, 512, 1792
        return {
            "x": _w((lambda *s: torch.randn(*s, dtype=torch.bfloat16) * 0.05)(B, S, D)),
            "w_gate": _w((lambda *s: torch.randn(*s, dtype=torch.bfloat16) * 0.8)(D, F) * (D ** -0.5)),
            "w_up": _w((lambda *s: torch.randn(*s, dtype=torch.bfloat16) * 0.8)(D, F) * (D ** -0.5)),
            "w_down": _w((lambda *s: torch.randn(*s, dtype=torch.bfloat16) * 0.8)(F, D) * (F ** -0.5)),
        }
    _B_in = _B_setup()

    return {
        "A_x": _A_in["x"],
        "A_wqkv": _A_in["wqkv"],
        "A_wo": _A_in["wo"],
        "B_x": _B_in["x"],
        "B_w_gate": _B_in["w_gate"],
        "B_w_up": _B_in["w_up"],
        "B_w_down": _B_in["w_down"],
    }

def reference(A_x, A_wqkv, A_wo, B_x, B_w_gate, B_w_up, B_w_down):
    def _A_ref(x, wqkv, wo):
        B, S, D = x.shape
        H = 32; Dh = D // H
        W, dil = 8, 2
        qkv = (lambda x, *d: x.permute(*d))((x @ wqkv).reshape(B, S, 3, H, Dh), 2, 0, 3, 1, 4)
        q, k, v = qkv[0], qkv[1], qkv[2]
        scale = Dh ** -0.5
        pos = torch.arange(S)
        off = torch.arange(W) * dil
        idx = pos[:, None] - off[None, :]
        mask = idx >= 0
        idx_c = torch.where(mask, idx, 0).reshape(-1)
        kg = k[:, :, idx_c, :].reshape(B, H, S, W, Dh)
        vg = v[:, :, idx_c, :].reshape(B, H, S, W, Dh)
        logits = torch.einsum("bhsd,bhswd->bhsw", q, kg) * scale
        logits = torch.where(mask[None, None, :, :], logits, -1e9)
        attn = _softmax(logits, axis=-1)
        o = torch.einsum("bhsw,bhswd->bhsd", attn, vg)
        return (lambda x, *d: x.permute(*d))(o, 0, 2, 1, 3).reshape(B, S, D) @ wo

    def _B_ref(x, w_gate, w_up, w_down):
        g = torch.einsum("bsd,df->bsf", x, w_gate)
        u = torch.einsum("bsd,df->bsf", x, w_up)
        h = g * u
        return torch.einsum("bsf,fd->bsd", h, w_down)

    x = A_x
    xn = _layernorm(x, axis=-1)
    return x + _A_ref(xn, A_wqkv, A_wo) + _B_ref(xn, B_w_gate, B_w_up, B_w_down)
```

```python
import re

def parse_regs(tok):
    tok = tok.strip()
    m = re.fullmatch(r'([vsa])(\d+)', tok)
    if m:
        return [(m.group(1), int(m.group(2)))]
    m = re.fullmatch(r'([vsa])\[(\d+):(\d+)\]', tok)
    if m:
        return [(m.group(1), i) for i in range(int(m.group(2)), int(m.group(3)) + 1)]
    if tok in ('vcc', 'vcc_lo', 'vcc_hi'):
        return [('s', 'vcc')]
    if tok in ('exec', 'exec_lo', 'exec_hi'):
        return [('s', 'exec')]
    if tok == 'm0':
        return [('s', 'm0')]
    return []

TRANS = ('v_exp_f32', 'v_log_f32', 'v_rcp_f32', 'v_rsq_f32', 'v_sqrt_f32', 'v_sin_f32', 'v_cos_f32')

class Ins:
    __slots__ = ('text', 'op', 'ops', 'mods', 'kind', 'vw', 'vr', 'sw', 'sr', 'passes', 'mA', 'mB', 'mC', 'dpp',
                 'is_trans', 'wide_store_data', 'is_lds_dma', 'nops', 'is_dot', 'addr_regs', 'load_dst')

    def __init__(self, text):
        self.text = text
        t = text.split(';')[0].strip()
        parts = t.split(None, 1)
        self.op = parts[0]
        rest = parts[1] if len(parts) > 1 else ''
        toks = [x.strip() for x in rest.split(',')] if rest else []
        self.mods = ''
        if toks:
            last = toks[-1].split(None, 1)
            toks[-1] = last[0]
            self.mods = last[1] if len(last) > 1 else ''
        self.ops = toks
        self.vw = set(); self.vr = set(); self.sw = set(); self.sr = set()
        self.passes = 0; self.mA = set(); self.mB = set(); self.mC = set()
        self.dpp = False; self.is_trans = False; self.wide_store_data = set(); self.is_lds_dma = False
        self.nops = 0; self.is_dot = False; self.load_dst = set()
        self.kind = 'other'
        self.classify()

    def R(self, i):
        return parse_regs(self.ops[i]) if i < len(self.ops) else []

    def addr(self, regs, write=False):
        for r in regs:
            if r[0] in ('v', 'a'):
                (self.vw if write else self.vr).add(r)
            else:
                (self.sw if write else self.sr).add(r)

    def classify(self):
        op = self.op
        if op == 's_nop':
            self.kind = 'nop'; self.nops = int(self.ops[0], 0) + 1
            return
        if op.startswith('v_mfma'):
            self.kind = 'mfma'
            if '32x32x16' in op or '32x32x8' in op: self.passes = 8
            elif '16x16x32' in op or '16x16x16' in op: self.passes = 4
            elif '4x4x4' in op: self.passes = 2
            else: raise ValueError(op)
            self.addr(self.R(0), True)
            self.mA = set(self.R(1)); self.mB = set(self.R(2)); self.mC = set(self.R(3))
            self.vr |= self.mA | self.mB | self.mC
            return
        if op.startswith('v_'):
            self.kind = 'valu'
            base = op.replace('_e32', '').replace('_e64', '').replace('_dpp', '').replace('_sdwa', '')
            self.is_trans = base in TRANS
            self.is_dot = base.startswith('v_dot')
            self.dpp = any(k in self.mods for k in ('row_shr', 'row_shl', 'row_ror', 'wave_shr', 'wave_shl', 'row_bcast', 'quad_perm', 'row_mirror', 'row_half_mirror', 'wave_ror', 'wave_rol', 'row_newbcast')) or op.endswith('_dpp')
            if base.startswith('v_cmp'):
                self.addr(self.R(0), True)
                for i in range(1, len(self.ops)): self.addr(self.R(i))
            elif base in ('v_readfirstlane_b32', 'v_readlane_b32'):
                self.kind = 'readlane'
                self.addr(self.R(0), True)
                for i in range(1, len(self.ops)): self.addr(self.R(i))
            elif base.startswith('v_permlane') and 'swap' in base:
                self.kind = 'permlane'
                self.addr(self.R(0), True); self.addr(self.R(1), True)
                self.addr(self.R(0)); self.addr(self.R(1))
            elif base in ('v_add_co_u32', 'v_sub_co_u32', 'v_addc_co_u32', 'v_subb_co_u32', 'v_subrev_co_u32'):
                self.addr(self.R(0), True); self.addr(self.R(1), True)
                for i in range(2, len(self.ops)): self.addr(self.R(i))
            else:
                self.addr(self.R(0), True)
                for i in range(1, len(self.ops)): self.addr(self.R(i))
                if base in ('v_fmac_f32', 'v_dot2c_f32_bf16', 'v_mac_f32', 'v_writelane_b32') or self.dpp:
                    self.addr(self.R(0))
                if base == 'v_cndmask_b32' and len(self.ops) == 3:
                    self.sr.add(('s', 'vcc'))
            return
        if op.startswith('ds_'):
            self.kind = 'ds'
            if op.startswith('ds_read') or op.startswith('ds_bpermute') or op.startswith('ds_permute') or op.startswith('ds_swizzle'):
                self.addr(self.R(0), True); self.load_dst = set(self.R(0))
                for i in range(1, len(self.ops)): self.addr(self.R(i))
            else:
                for i in range(len(self.ops)): self.addr(self.R(i))
            return
        if op.startswith('buffer_') or op.startswith('global_'):
            self.kind = 'vmem'
            words = self.mods.split()
            lds = ('lds' in words) or ('_lds_' in op)
            self.is_lds_dma = lds
            if op in ('buffer_wbl2', 'buffer_inv'):
                return
            if 'load' in op and not lds:
                self.addr(self.R(0), True); self.load_dst = set(self.R(0))
                for i in range(1, len(self.ops)): self.addr(self.R(i))
            elif 'atomic' in op and ('sc0' in words):
                self.addr(self.R(0), True); self.load_dst = set(self.R(0))
                for i in range(0, len(self.ops)): self.addr(self.R(i))
            else:
                for i in range(len(self.ops)): self.addr(self.R(i))
                if 'store' in op and ('x4' in op or 'x3' in op):
                    d = self.R(0) if op.startswith('buffer_') else self.R(1)
                    self.wide_store_data = set(d)
            if lds: self.sr.add(('s', 'm0'))
            return
        if op.startswith('s_'):
            self.kind = 'salu'
            if op.startswith(('s_cmp', 's_cbranch', 's_branch', 's_waitcnt', 's_barrier', 's_endpgm', 's_sleep', 's_setprio', 's_bitcmp')):
                for i in range(len(self.ops)): self.addr(self.R(i))
            elif op.startswith('s_load') or op.startswith('s_buffer_load') or op.startswith('s_memtime') or op.startswith('s_memrealtime'):
                self.kind = 'smem'
                self.addr(self.R(0), True)
                for i in range(1, len(self.ops)): self.addr(self.R(i))
            else:
                self.addr(self.R(0), True)
                for i in range(1, len(self.ops)): self.addr(self.R(i))
                if 'saveexec' in op:
                    self.sw.add(('s', 'exec'))
            return
        raise ValueError("unknown instruction " + self.text)


def need_states(prev, cur):
    n = 0
    pk, ck = prev.kind, cur.kind
    valu_like_prev = pk in ('valu', 'readlane', 'permlane')
    if valu_like_prev:
        w = prev.vw
        if w:
            if ck == 'mfma' and (w & cur.vr): n = max(n, 2)
            if cur.dpp and (w & cur.vr): n = max(n, 2)
            if ck == 'permlane' and (w & cur.vr): n = max(n, 2)
            if ck == 'readlane' and (w & cur.vr): n = max(n, 1)
            if prev.is_trans and ck in ('valu', 'permlane', 'readlane') and not cur.is_trans and (w & cur.vr): n = max(n, 1)
            if prev.is_trans and ck in ('valu',) and cur.is_trans and (w & cur.vr): n = max(n, 1)
            if prev.is_dot and ck in ('valu', 'permlane', 'readlane', 'mfma', 'vmem', 'ds') and (w & (cur.vr | cur.vw)):
                if not (cur.op == prev.op and not (w & (cur.vr - w))):
                    n = max(n, 3)
                else:
                    srcs = set()
                    for i in (1, 2): srcs |= set(cur.R(i))
                    if w & srcs: n = max(n, 3)
        sw = prev.sw
        if sw:
            if ck in ('valu', 'permlane') and (sw & cur.sr): n = max(n, 2)
            if ck == 'readlane' and (sw & cur.sr): n = max(n, 4)
            if ck == 'vmem' and (sw & cur.sr): n = max(n, 5)
            if ck in ('salu', 'smem') and (sw & cur.sr): n = max(n, 0)
    if pk == 'mfma':
        D = prev.vw
        p = prev.passes
        t_read = {2: 5, 4: 8, 8: 12}[p]
        if ck == 'mfma':
            if D & (cur.mA | cur.mB): n = max(n, t_read)
            if D & cur.mC:
                if cur.mC == D and cur.passes == p:
                    n = max(n, 2 if p == 2 else 0)
                else:
                    n = max(n, {2: 4, 4: 6, 8: 10}[p])
            elif D & cur.vw:
                n = max(n, {2: 4, 4: 6, 8: 10}[p])
        elif ck in ('valu', 'readlane', 'permlane', 'vmem', 'ds'):
            if D & (cur.vr | cur.vw): n = max(n, t_read)
        if ck in ('valu', 'permlane') and (prev.mC & cur.vw):
            n = max(n, {2: 1, 4: 3, 8: 7}[p])
    if pk == 'salu' and ('s', 'm0') in prev.sw and cur.is_lds_dma:
        n = max(n, 1)
    if prev.wide_store_data:
        if ck in ('valu', 'permlane') and (prev.wide_store_data & cur.vw): n = max(n, 2)
        elif prev.wide_store_data & cur.vw: n = max(n, 1)
    return n


class Asm:
    def __init__(self):
        self.items = []
        self.uid = 0

    def __call__(self, text):
        for line in text.split('\n'):
            line = line.strip()
            if not line:
                continue
            if line.startswith(';'):
                self.items.append(('c', line))
            elif line.endswith(':'):
                self.items.append(('l', line[:-1]))
            else:
                self.items.append(('i', Ins(line)))

    def label(self, name):
        self.items.append(('l', name))

    def raw(self, text):
        self.items.append(('c', text))

    def newlabel(self, base):
        self.uid += 1
        return f"{base}_{self.uid}"

    def _states(self, ins):
        return ins.nops if ins.kind == 'nop' else 1

    def finalize(self, window=24):
        for _ in range(10):
            if not self._pad_pass(window):
                return
        raise RuntimeError("hazard padding did not converge")

    def _maps(self):
        items = self.items
        labels = {it[1]: i for i, it in enumerate(items) if it[0] == 'l'}
        branch_to = {}
        for i, it in enumerate(items):
            if it[0] == 'i' and (it[1].op.startswith('s_cbranch') or it[1].op == 's_branch'):
                tgt = it[1].ops[0]
                branch_to.setdefault(labels[tgt], []).append(i)
        return branch_to

    def _pad_pass(self, window):
        changed = False
        branch_to = self._maps()
        i = 0
        while i < len(self.items):
            items = self.items
            it = items[i]
            if it[0] != 'i' or it[1].kind == 'nop':
                i += 1
                continue
            cur = it[1]
            def preds(k):
                res = []
                if items[k][0] == 'l':
                    res += branch_to.get(k, [])
                if k > 0:
                    p = items[k - 1]
                    if not (p[0] == 'i' and p[1].op in ('s_branch', 's_endpgm')):
                        res.append(k - 1)
                return res
            worst = 0
            why = None
            stack = [(p, 0) for p in preds(i)]
            seen = {}
            while stack:
                j, dist = stack.pop()
                if dist >= window:
                    continue
                if seen.get(j, 1 << 30) <= dist:
                    continue
                seen[j] = dist
                pj = items[j]
                nd = dist
                if pj[0] == 'i':
                    need = need_states(pj[1], cur)
                    if need - dist > worst:
                        worst = need - dist
                        why = pj[1].text
                    nd = dist + self._states(pj[1])
                for p in preds(j):
                    stack.append((p, nd))
            if worst > 0:
                pad = []
                w = worst
                while w > 0:
                    k = min(w, 8)
                    pad.append(('i', Ins(f"s_nop {k-1}")))
                    w -= k
                self.items[i:i] = pad
                self.npad = getattr(self, 'npad', 0) + worst
                branch_to = self._maps()
                changed = True
                i += len(pad)
            i += 1
        return changed

    def text(self):
        out = []
        for k, v in self.items:
            if k == 'i': out.append("    " + v.text)
            elif k == 'l': out.append(v + ":")
            else: out.append(v)
        return "\n".join(out) + "\n"

    def count(self):
        return sum(1 for k, v in self.items if k == 'i')
```

```python
import sys
from asmfw import Asm

NAME = "parallel_sum__sliding_local_dilated__glu_gated_bilinear__prompt"

ACT_T = 144 * 1024
STATS_OFF = 64 * ACT_T
CS_OFF = STATS_OFF + 2048 * 8
WS_SIZE = 0x1000000

QSCALE = 0.25 * 1.4426950408889634
import struct
def f32(x):
    return "0x%08x" % struct.unpack('<I', struct.pack('<f', x))[0]

def kernel_header(a, name):
    a.raw(f".globl {name}\n.p2align 8\n.type {name},@function\n{name}:")

def kernel_desc(name, vgpr, sgpr):
    acc = (vgpr + 3) // 4 * 4
    return (f".amdhsa_kernel {name}\n  .amdhsa_next_free_vgpr {vgpr}\n  .amdhsa_next_free_sgpr {sgpr}\n"
            f"  .amdhsa_accum_offset {acc}\n  .amdhsa_group_segment_fixed_size 0\n  .amdhsa_kernarg_size 80\n"
            f"  .amdhsa_user_sgpr_count 2\n  .amdhsa_user_sgpr_kernarg_segment_ptr 1\n"
            f"  .amdhsa_system_sgpr_workgroup_id_x 1\n.end_amdhsa_kernel\n")

def srd(a, d, ptr, nbytes):
    a(f"s_mov_b32 s{d}, s{ptr}\ns_mov_b32 s{d+1}, s{ptr+1}\ns_mov_b32 s{d+2}, 0x{nbytes:x}\ns_mov_b32 s{d+3}, 0x00020000")

def wave_allsum(a, v, t):
    for n in (8, 4, 2, 1):
        a(f"v_add_f32_dpp v{v}, v{v}, v{v} row_ror:{n} row_mask:0xf bank_mask:0xf")
    a(f"v_mov_b32 v{t}, v{v}")
    a(f"v_permlane16_swap_b32 v{v}, v{t}")
    a(f"v_add_f32 v{v}, v{v}, v{t}")
    a(f"v_mov_b32 v{t}, v{v}")
    a(f"v_permlane32_swap_b32 v{v}, v{t}")
    a(f"v_add_f32 v{v}, v{v}, v{t}")

def gen_k0(name):
    a = Asm()
    kernel_header(a, name)
    a("s_cmp_ge_u32 s2, 256\ns_cbranch_scc1 K0_END")
    a("s_load_dwordx2 s[4:5], s[0:1], 0\ns_load_dwordx2 s[6:7], s[0:1], 8\ns_load_dwordx2 s[8:9], s[0:1], 32\n"
      "s_load_dwordx2 s[10:11], s[0:1], 40\ns_load_dwordx2 s[12:13], s[0:1], 72")
    a("v_and_b32 v1, 63, v0\nv_lshrrev_b32 v2, 6, v0")
    a("v_readfirstlane_b32 s38, v2")
    a("s_waitcnt lgkmcnt(0)")
    srd(a, 16, 4, 2048 * 1024)
    srd(a, 32, 12, WS_SIZE)
    a("s_lshl_b32 s3, s2, 3\ns_add_u32 s3, s3, s38")
    a("s_lshl_b32 s40, s3, 10")
    a("v_lshlrev_b32 v3, 4, v1")
    a("buffer_load_dwordx4 v[4:7], v3, s[16:19], s40 offen")
    a("s_waitcnt vmcnt(0)")
    for i in range(4):
        a(f"v_lshlrev_b32 v{8+2*i}, 16, v{4+i}\nv_and_b32 v{9+2*i}, 0xffff0000, v{4+i}")
    a("v_add_f32 v16, v8, v9\nv_add_f32 v17, v10, v11\nv_add_f32 v18, v12, v13\nv_add_f32 v19, v14, v15")
    a("v_add_f32 v16, v16, v17\nv_add_f32 v18, v18, v19\nv_add_f32 v16, v16, v18")
    wave_allsum(a, 16, 17)
    a(f"v_mul_f32 v16, {f32(1/512)}, v16")
    for i in range(8):
        a(f"v_sub_f32 v{8+i}, v{8+i}, v16")
    a("v_mul_f32 v18, v8, v8")
    for i in range(1, 8):
        a(f"v_fmac_f32 v18, v{8+i}, v{8+i}")
    wave_allsum(a, 18, 17)
    a(f"v_mov_b32 v19, {f32(1e-5)}")
    a(f"v_fmac_f32 v19, {f32(1/512)}, v18")
    a("v_rsq_f32 v17, v19")
    a("s_lshl_b32 s41, s3, 3")
    a(f"s_add_u32 s41, s41, 0x{STATS_OFF:x}")
    a("v_mov_b32 v20, 0")
    a("s_mov_b64 s[42:43], exec\ns_mov_b64 exec, 1")
    a("buffer_store_dwordx2 v[16:17], v20, s[32:35], s41 offen")
    a("s_mov_b64 exec, s[42:43]")
    a("s_cmp_ge_u32 s2, 80\ns_cbranch_scc1 K0_DONE")
    a("s_cmp_lt_u32 s2, 24\ns_cbranch_scc1 K0_QKV")
    a("s_cmp_lt_u32 s2, 52\ns_cbranch_scc1 K0_G")
    srd(a, 20, 10, 512 * 3584)
    a("s_mov_b32 s44, 3584\ns_sub_u32 s45, s2, 52\ns_lshl_b32 s46, s45, 6\ns_add_u32 s46, s46, 3328\ns_branch K0_CS")
    a.label("K0_G")
    srd(a, 20, 8, 512 * 3584)
    a("s_mov_b32 s44, 3584\ns_sub_u32 s45, s2, 24\ns_lshl_b32 s46, s45, 6\ns_add_u32 s46, s46, 1536\ns_branch K0_CS")
    a.label("K0_QKV")
    srd(a, 20, 6, 512 * 3072)
    a("s_mov_b32 s44, 3072\ns_mov_b32 s45, s2\ns_lshl_b32 s46, s45, 6")
    a.label("K0_CS")
    a("v_and_b32 v21, 31, v0\nv_lshrrev_b32 v22, 5, v0")
    a("v_lshlrev_b32 v23, 5, v22\nv_mul_lo_u32 v23, v23, s44")
    a("v_lshlrev_b32 v31, 2, v21\nv_add_u32 v23, v23, v31")
    a("s_lshl_b32 s47, s45, 7")
    a("v_mov_b32 v24, 0\nv_mov_b32 v25, 0")
    for blk in range(4):
        for i in range(8):
            a(f"buffer_load_dword v{32+i}, v23, s[20:23], s47 offen")
            a("s_add_u32 s47, s47, s44")
        a("s_waitcnt vmcnt(0)")
        for i in range(8):
            a(f"v_lshlrev_b32 v27, 16, v{32+i}\nv_and_b32 v28, 0xffff0000, v{32+i}\nv_add_f32 v24, v24, v27\nv_add_f32 v25, v25, v28")
    a("v_lshlrev_b32 v29, 3, v0")
    a("ds_write_b64 v29, v[24:25]")
    a("s_waitcnt lgkmcnt(0)\ns_barrier")
    a("v_cmp_gt_u32 vcc, 64, v0\ns_and_saveexec_b64 s[42:43], vcc\ns_cbranch_execz K0_DONE")
    a("v_lshlrev_b32 v29, 2, v0")
    a("v_mov_b32 v30, 0")
    for g in range(16):
        a(f"ds_read_b32 v{32+g}, v29 offset:{g*256}")
    a("s_waitcnt lgkmcnt(0)")
    for g in range(16):
        a(f"v_add_f32 v30, v30, v{32+g}")
    a(f"s_lshl_b32 s48, s46, 2\ns_add_u32 s48, s48, 0x{CS_OFF:x}")
    a("buffer_store_dword v30, v29, s[32:35], s48 offen")
    a.label("K0_DONE")
    a("s_waitcnt vmcnt(0)")
    a.label("K0_END")
    a("s_endpgm")
    a.finalize()
    return a, kernel_desc(name, 64, 64)

WSLOT = 20608
XRING = 5 * WSLOT
XSLOT = 18432
K1_LDS = XRING + 3 * XSLOT
FFN_UOFF = 10272
KS = WSLOT
VS = KS + 18432
KPL = 72 * 16
VPL = 72 * 8

S_X, S_W0, S_WG, S_WU, S_WS = 16, 20, 24, 28, 32
S_RB, S_CB, S_WAVE, S_RP, S_IX = 36, 37, 38, 39, 40
S_B = 41
S_IT = 42
S_WRD = 43
S_XRD = 44
S_WDST, S_XDST = 45, 46
S_SRC0, S_SRC1, S_XSRC, S_HSRC = 47, 48, 49, 50
S_T0, S_T1, S_T2, S_T3 = 51, 52, 53, 54
S_DW, S_DX = 55, 56
S_M1, S_M2, S_M3 = 58, 60, 62
S_EX = 64

def fold_a_frag(a, dst, c, tmp, lomask_pair):
    a(f"v_cndmask_b32 v{c}, 0, v{c}, s[{lomask_pair}:{lomask_pair+1}]")
    a(f"v_cvt_pk_bf16_f32 v{dst}, v{c}, v{c}")
    a(f"v_and_b32 v{tmp}, 0xffff0000, v{dst}")
    a(f"v_sub_f32 v{tmp}, v{c}, v{tmp}")
    a(f"v_cvt_pk_bf16_f32 v{dst+1}, v{tmp}, v{tmp}")
    a(f"v_mov_b32 v{dst+2}, 0\nv_mov_b32 v{dst+3}, 0")

def fold_b_frag(a, dst, mean, tmp, tmp2):
    a(f"v_sub_f32 v{tmp2}, 0, v{mean}")
    a(f"v_cvt_pk_bf16_f32 v{tmp}, v{tmp2}, v{tmp2}")
    a(f"v_and_b32 v{tmp}, 0xffff0000, v{tmp}")
    a(f"v_sub_f32 v{tmp}, v{tmp2}, v{tmp}")
    a(f"v_cvt_pk_bf16_f32 v{dst}, v{tmp2}, v{tmp}")
    a(f"v_mov_b32 v{dst+1}, v{dst}")
    a(f"v_mov_b32 v{dst+2}, 0\nv_mov_b32 v{dst+3}, 0")

def ring_adv(a, sreg, slot, n, sdelta):
    a(f"s_add_u32 s{sreg}, s{sreg}, {slot}")
    a(f"s_cmp_eq_u32 s{sreg}, {n*slot}")
    a(f"s_cselect_b32 s{sdelta}, {-(n-1)*slot & 0xffffffff}, {slot}")
    a(f"s_cselect_b32 s{sreg}, 0, s{sreg}")

def interleave(a, mf, others):
    n = len(mf)
    k = len(others)
    idx = 0
    for i, m in enumerate(mf):
        a(m)
        upto = (k * (i + 1) + n - 1) // n
        while idx < upto:
            a(others[idx]); idx += 1
    while idx < k:
        a(others[idx]); idx += 1

def gen_k1_role(a, typ, role):
    P = f"K1{typ}{role}"
    att = typ == 'att'
    isA = role == 'A'
    NT = 3 if isA else 2
    ACC = 64
    def acc(c, t): return ACC + (c * 2 + t) * 16
    HACC = 128
    FB = 160
    FSZ = NT * 4 + 8
    def fW(p, c): return FB + p * FSZ + c * 4
    def fX(p, t): return FB + p * FSZ + NT * 4 + t * 4
    HF = 204
    VW = [2, 3]
    VWH = 4
    VX = [8, 9, 10, 11]
    VXH = [12, 13]
    VD = [16, 17, 18, 19, 20]
    VDX = [21, 22]
    VDH = 23
    VST = 24
    VCS = 28
    VSTH = 32
    VCSH = 34
    T = 40
    a.label(P)
    a(f"v_and_b32 v{T}, 31, v1")
    a(f"v_lshlrev_b32 v{T}, 4, v{T}")
    a(f"s_lshl_b32 s{S_T0}, s{S_RB}, 10\ns_lshl_b32 s{S_T1}, s{S_RP}, 9\ns_add_u32 s{S_T0}, s{S_T0}, s{S_T1}")
    a(f"s_add_u32 s{S_T0}, s{S_T0}, 0x{STATS_OFF:x}")
    a(f"buffer_load_dwordx4 v[{VST}:{VST+3}], v{T}, s[{S_WS}:{S_WS+3}], s{S_T0} offen")
    if att and isA:
        a(f"v_and_b32 v{T+1}, 31, v1\nv_lshlrev_b32 v{T+1}, 2, v{T+1}")
        a(f"s_lshl_b32 s{S_T0}, s{S_CB}, 8\ns_lshl_b32 s{S_T1}, s{S_IX}, 7\ns_add_u32 s{S_T0}, s{S_T0}, s{S_T1}")
        a(f"s_add_u32 s{S_T0}, s{S_T0}, 0x{CS_OFF:x}")
        for c in range(3):
            a(f"buffer_load_dword v{VCS+c}, v{T+1}, s[{S_WS}:{S_WS+3}], s{S_T0} offen")
            if c < 2: a(f"s_add_u32 s{S_T0}, s{S_T0}, 2048")
    else:
        a(f"v_and_b32 v{T+1}, 15, v1\nv_bfe_u32 v{T+2}, v1, 4, 1\nv_mul_u32_u24 v{T+2}, 1792, v{T+2}")
        a(f"v_add_u32 v{T+1}, v{T+1}, v{T+2}\nv_lshlrev_b32 v{T+1}, 2, v{T+1}")
        if att:
            a(f"s_lshl_b32 s{S_T0}, s{S_CB}, 6\ns_lshl_b32 s{S_T1}, s{S_IX}, 5\ns_add_u32 s{S_T0}, s{S_T0}, s{S_T1}")
        else:
            a(f"s_mul_i32 s{S_T0}, s{S_CB}, 160\ns_add_u32 s{S_T0}, s{S_T0}, 512")
            if isA:
                a(f"s_mul_i32 s{S_T1}, s{S_IX}, 48")
            else:
                a(f"s_lshl_b32 s{S_T1}, s{S_IX}, 5\ns_add_u32 s{S_T1}, s{S_T1}, 96")
            a(f"s_add_u32 s{S_T0}, s{S_T0}, s{S_T1}")
        a(f"s_add_u32 s{S_T0}, s{S_T0}, 1536\ns_lshl_b32 s{S_T0}, s{S_T0}, 2\ns_add_u32 s{S_T0}, s{S_T0}, 0x{CS_OFF:x}")
        for c in range(NT):
            a(f"buffer_load_dword v{VCS+c}, v{T+1}, s[{S_WS}:{S_WS+3}], s{S_T0} offen offset:{64*c}")
    halo = att and not isA
    if halo:
        a(f"v_and_b32 v{T+3}, 7, v1\nv_lshlrev_b32 v{T+3}, 1, v{T+3}\nv_bfe_u32 v{T+4}, v1, 3, 1\nv_add_u32 v{T+3}, v{T+3}, v{T+4}")
        a(f"s_lshl_b32 s{S_T0}, s{S_RB}, 7\ns_sub_u32 s{S_T0}, s{S_T0}, 16\ns_max_i32 s{S_T0}, s{S_T0}, 0")
        a(f"v_add_u32 v{T+3}, s{S_T0}, v{T+3}")
        a(f"v_lshlrev_b32 v{T+4}, 3, v{T+3}")
        a(f"s_mov_b32 s{S_T1}, 0x{STATS_OFF:x}")
        a(f"buffer_load_dwordx2 v[{VSTH}:{VSTH+1}], v{T+4}, s[{S_WS}:{S_WS+3}], s{S_T1} offen")
        a(f"v_and_b32 v{T+5}, 15, v1\nv_lshlrev_b32 v{T+5}, 2, v{T+5}")
        a(f"s_lshl_b32 s{S_T0}, s{S_CB}, 8\ns_lshl_b32 s{S_T1}, s{S_B}, 6\ns_add_u32 s{S_T0}, s{S_T0}, s{S_T1}")
        a(f"s_add_u32 s{S_T0}, s{S_T0}, 0x{CS_OFF + 2048:x}")
        a(f"buffer_load_dword v{VCSH}, v{T+5}, s[{S_WS}:{S_WS+3}], s{S_T0} offen")
        a(f"buffer_load_dword v{VCSH+1}, v{T+5}, s[{S_WS}:{S_WS+3}], s{S_T0} offen offset:2048")
    n_pre_loads = 1 + NT + (3 if halo else 0)

    a(f"v_lshrrev_b32 v{T}, 4, v1")
    a(f"v_bfe_u32 v{T+1}, v1, 2, 2")
    a(f"v_and_b32 v{T+2}, 3, v1")
    a(f"v_lshrrev_b32 v{T+3}, 1, v{T}")
    a(f"v_and_b32 v{T+4}, 1, v{T}")
    a(f"v_lshlrev_b32 v{T+5}, 3, v{T+3}\nv_add_u32 v{T+5}, v{T+5}, v{T+1}")
    a(f"v_lshrrev_b32 v{T+6}, 1, v{T+1}")
    if att:
        a(f"v_xor_b32 v{T+7}, s{S_IX}, v{T+6}\nv_lshlrev_b32 v{T+7}, 6, v{T+7}")
        a(f"v_lshlrev_b32 v{T+8}, 7, v{T+5}\nv_add_u32 v{T+8}, v{T+8}, v{T+7}")
        a(f"v_lshlrev_b32 v{T+9}, 3, v{T+2}\nv_add_u32 v{T+8}, v{T+8}, v{T+9}")
        if isA:
            a(f"v_lshlrev_b32 v{T+9}, 5, v{T+4}\nv_add_u32 v{VW[0]}, v{T+8}, v{T+9}")
        else:
            a(f"v_mul_u32_u24 v{T+9}, {4096+32}, v{T+4}")
            a(f"v_add_u32 v{VW[0]}, v{T+8}, v{T+9}\nv_add_u32 v{VW[0]}, {3*4096}, v{VW[0]}")
            a(f"v_xor_b32 v{VW[1]}, 32, v{VW[0]}")
            a(f"v_lshlrev_b32 v{T+9}, 3, v{T}\nv_add_u32 v{T+9}, v{T+9}, v{T+1}\nv_lshlrev_b32 v{T+9}, 7, v{T+9}")
            a(f"s_lshr_b32 s{S_T0}, s{S_B}, 1\ns_and_b32 s{S_T1}, s{S_B}, 1\ns_lshl_b32 s{S_T1}, s{S_T1}, 5\ns_add_u32 s{S_T1}, s{S_T1}, 4096")
            a(f"v_xor_b32 v{T+10}, s{S_T0}, v{T+6}\nv_lshlrev_b32 v{T+10}, 6, v{T+10}")
            a(f"v_add_u32 v{T+9}, v{T+9}, v{T+10}\nv_lshlrev_b32 v{T+10}, 3, v{T+2}\nv_add_u32 v{T+9}, v{T+9}, v{T+10}")
            a(f"v_add_u32 v{VWH}, s{S_T1}, v{T+9}")
    else:
        a(f"v_mul_u32_u24 v{T+7}, {FFN_UOFF}, v{T+4}\nv_mul_u32_u24 v{T+8}, 320, v{T+5}\nv_add_u32 v{T+7}, v{T+7}, v{T+8}")
        a(f"v_lshlrev_b32 v{T+9}, 3, v{T+2}\nv_add_u32 v{T+7}, v{T+7}, v{T+9}")
        if isA:
            a(f"s_mul_i32 s{S_T0}, s{S_IX}, 96")
        else:
            a(f"s_lshl_b32 s{S_T0}, s{S_IX}, 6\ns_add_u32 s{S_T0}, s{S_T0}, 192")
        a(f"v_add_u32 v{VW[0]}, s{S_T0}, v{T+7}")
    a(f"v_and_b32 v{T}, 31, v1\nv_lshrrev_b32 v{T+1}, 5, v1\nv_bfe_u32 v{T+2}, v1, 1, 3")
    a(f"v_xor_b32 v{T+2}, v{T+2}, v{T+1}\nv_lshlrev_b32 v{T+2}, 4, v{T+2}")
    a(f"v_lshlrev_b32 v{T}, 7, v{T}\nv_add_u32 v{T}, v{T}, v{T+2}")
    a(f"s_lshl_b32 s{S_T0}, s{S_RP}, 13\ns_add_u32 s{S_T0}, s{S_T0}, {XRING}")
    a(f"v_add_u32 v{VX[0]}, s{S_T0}, v{T}")
    for cu in range(1, 4):
        a(f"v_xor_b32 v{VX[cu]}, {cu*32}, v{VX[0]}")
    if halo:
        a(f"v_and_b32 v{T}, 15, v1\nv_lshrrev_b32 v{T+1}, 4, v1\nv_bfe_u32 v{T+2}, v1, 1, 3")
        a(f"v_xor_b32 v{T+2}, v{T+2}, v{T+1}\nv_lshlrev_b32 v{T+2}, 4, v{T+2}")
        a(f"v_lshlrev_b32 v{T}, 7, v{T}\nv_add_u32 v{T}, v{T}, v{T+2}")
        a(f"v_add_u32 v{VXH[0]}, {XRING + 16384}, v{T}\nv_xor_b32 v{VXH[1]}, 64, v{VXH[0]}")

    NXI = 5 if halo else 4
    if not isA:
        a(f"v_lshrrev_b32 v{T}, 3, v1\nv_and_b32 v{T+1}, 7, v1\nv_lshrrev_b32 v{T+2}, 4, v1")
        if att:
            a(f"v_and_b32 v{T+3}, 1, v{T+2}\nv_lshlrev_b32 v{T+3}, 2, v{T+3}\nv_xor_b32 v{T+3}, v{T+3}, v{T+1}")
            a(f"v_lshlrev_b32 v{T+4}, 4, v{T+3}")
            a(f"v_mul_u32_u24 v{T+5}, 3072, v{T}\nv_add_u32 v{VD[0]}, v{T+5}, v{T+4}")
            a(f"v_mul_u32_u24 v{T+5}, 3584, v{T}\nv_add_u32 v{VD[1]}, v{T+5}, v{T+4}")
            a(f"v_xor_b32 v{T+4}, 32, v{T+4}\nv_add_u32 v{VD[2]}, v{T+5}, v{T+4}")
            a(f"s_mul_i32 s{S_SRC0}, s{S_B}, {8*3072}\ns_lshl_b32 s{S_T0}, s{S_CB}, 7\ns_add_u32 s{S_SRC0}, s{S_SRC0}, s{S_T0}")
            a(f"s_mul_i32 s{S_SRC1}, s{S_B}, {8*3584}\ns_add_u32 s{S_SRC1}, s{S_SRC1}, s{S_T0}")
            a(f"s_lshl_b32 s{S_WDST}, s{S_B}, 10")
        else:
            for m in range(5):
                a(f"v_add_u32 v{T+3}, {64*m}, v1")
                a(f"v_mul_u32_u24 v{T+4}, 3277, v{T+3}\nv_lshrrev_b32 v{T+4}, 16, v{T+4}")
                a(f"v_mul_u32_u24 v{T+5}, 20, v{T+4}\nv_sub_u32 v{T+5}, v{T+3}, v{T+5}")
                a(f"v_mul_u32_u24 v{T+4}, 3584, v{T+4}\nv_lshlrev_b32 v{T+5}, 4, v{T+5}\nv_add_u32 v{VD[m]}, v{T+4}, v{T+5}")
            a(f"s_cmp_lt_u32 s{S_B}, 2")
            for k in range(2):
                a(f"s_cselect_b32 s{S_W0+k}, s{S_WG+k}, s{S_WU+k}")
            a(f"s_mov_b32 s{S_W0+2}, 0x{512*3584:x}")
            a(f"s_and_b32 s{S_T1}, s{S_B}, 1")
            a(f"s_mul_i32 s{S_SRC0}, s{S_T1}, {16*3584}\ns_mul_i32 s{S_T0}, s{S_CB}, 320\ns_add_u32 s{S_SRC0}, s{S_SRC0}, s{S_T0}\ns_add_u32 s{S_SRC0}, s{S_SRC0}, 1024")
            a(f"s_mul_i32 s{S_WDST}, s{S_T1}, 5120\ns_lshr_b32 s{S_T0}, s{S_B}, 1\ns_mul_i32 s{S_T0}, s{S_T0}, {FFN_UOFF}\ns_add_u32 s{S_WDST}, s{S_WDST}, s{S_T0}")
        a(f"v_xor_b32 v{T+3}, v{T+1}, v{T+2}\nv_lshlrev_b32 v{T+3}, 4, v{T+3}\nv_lshlrev_b32 v{T+4}, 11, v{T}")
        a(f"v_add_u32 v{VDX[0]}, v{T+4}, v{T+3}\nv_xor_b32 v{VDX[1]}, 64, v{VDX[0]}")
        a(f"s_lshl_b32 s{S_XSRC}, s{S_RB}, 17\ns_lshr_b32 s{S_T0}, s{S_B}, 1\ns_lshl_b32 s{S_T0}, s{S_T0}, 16\ns_add_u32 s{S_XSRC}, s{S_XSRC}, s{S_T0}")
        a(f"s_and_b32 s{S_T0}, s{S_B}, 1\ns_lshl_b32 s{S_T0}, s{S_T0}, 10\ns_add_u32 s{S_XSRC}, s{S_XSRC}, s{S_T0}")
        a(f"s_lshl_b32 s{S_XDST}, s{S_B}, 12\ns_add_u32 s{S_XDST}, s{S_XDST}, {XRING}")
        if halo:
            a(f"s_lshl_b32 s{S_T0}, s{S_B}, 2")
            a(f"v_add_u32 v{T+3}, s{S_T0}, v{T}")
            a(f"v_and_b32 v{T+3}, 15, v{T+3}")
            a(f"v_and_b32 v{T+4}, 7, v{T+3}\nv_lshlrev_b32 v{T+4}, 1, v{T+4}\nv_lshrrev_b32 v{T+5}, 3, v{T+3}\nv_add_u32 v{T+4}, v{T+4}, v{T+5}")
            a(f"s_lshl_b32 s{S_T0}, s{S_RB}, 7\ns_sub_u32 s{S_T0}, s{S_T0}, 16\ns_max_i32 s{S_T0}, s{S_T0}, 0")
            a(f"v_add_u32 v{T+4}, s{S_T0}, v{T+4}\nv_lshlrev_b32 v{T+4}, 10, v{T+4}")
            a(f"v_bfe_u32 v{T+5}, v{T+3}, 1, 3\nv_xor_b32 v{T+5}, v{T+5}, v{T+1}\nv_lshlrev_b32 v{T+5}, 4, v{T+5}")
            a(f"v_add_u32 v{VDH}, v{T+4}, v{T+5}")
            a(f"s_mov_b32 s{S_HSRC}, 0")

    def dma_w():
        L = []
        if att:
            for p in range(5):
                srdn = S_W0 if p < 3 else (S_WG if p == 3 else S_WU)
                src = S_SRC0 if p < 3 else S_SRC1
                vo = VD[0] if p < 3 else VD[p - 2]
                g = [f"s_add_u32 m0, s{S_WDST}, {p*4096}"]
                if p in (1, 2):
                    g.append(f"s_add_u32 s{S_T0}, s{src}, {p*1024}")
                    so = S_T0
                else:
                    g.append("s_nop 0")
                    so = src
                g.append(f"buffer_load_dwordx4 v{vo}, s[{srdn}:{srdn+3}], s{so} offen lds")
                L.append(g)
            L.append([f"s_add_u32 s{S_SRC0}, s{S_SRC0}, {32*3072}", f"s_add_u32 s{S_SRC1}, s{S_SRC1}, {32*3584}"])
        else:
            for m in range(5):
                L.append([f"s_add_u32 m0, s{S_WDST}, {m*1024}", "s_nop 0",
                          f"buffer_load_dwordx4 v{VD[m]}, s[{S_W0}:{S_W0+3}], s{S_SRC0} offen lds"])
            L.append([f"s_add_u32 s{S_SRC0}, s{S_SRC0}, {32*3584}"])
        L.append([f"s_add_u32 s{S_WDST}, s{S_WDST}, {WSLOT}", f"s_add_u32 s57, s57, 1", f"s_cmp_eq_u32 s57, 5",
                  f"s_cselect_b32 s{S_T0}, {5*WSLOT}, 0", f"s_cselect_b32 s57, 0, s57", f"s_sub_u32 s{S_WDST}, s{S_WDST}, s{S_T0}"])
        return L

    def dma_x():
        L = []
        for i in range(4):
            g = [f"s_add_u32 m0, s{S_XDST}, {i*1024}"]
            if i:
                g.append(f"s_add_u32 s{S_T0}, s{S_XSRC}, {i*16384}"); so = S_T0
            else:
                g.append("s_nop 0"); so = S_XSRC
            g.append(f"buffer_load_dwordx4 v{VDX[i&1]}, s[{S_X}:{S_X+3}], s{so} offen lds")
            L.append(g)
        if halo:
            L.append([f"s_mul_i32 s{S_T0}, s{S_B}, {512-4096 & 0xffffffff}".replace(str(512-4096 & 0xffffffff), "-3584"),
                      f"s_add_u32 s{S_T0}, s{S_T0}, s{S_XDST}", f"s_add_u32 m0, s{S_T0}, 16384",
                      "s_mov_b32 exec_hi, 0",
                      f"buffer_load_dwordx4 v{VDH}, s[{S_X}:{S_X+3}], s{S_HSRC} offen lds",
                      "s_mov_b32 exec_hi, -1",
                      f"s_add_u32 s{S_HSRC}, s{S_HSRC}, 128"])
        L.append([f"s_add_u32 s{S_XSRC}, s{S_XSRC}, 128",
                  f"s_add_u32 s{S_XDST}, s{S_XDST}, {XSLOT}", f"s_add_u32 s65, s65, 1", f"s_cmp_eq_u32 s65, 3",
                  f"s_cselect_b32 s{S_T0}, {3*XSLOT}, 0", f"s_cselect_b32 s65, 0, s65", f"s_sub_u32 s{S_XDST}, s{S_XDST}, s{S_T0}"])
        return L

    def emit_groups(L):
        for g in L:
            for s in g: a(s)

    def reads(p, cs, cu):
        L = []
        for t in range(2):
            L.append(f"ds_read_b128 v[{fX(p,t)}:{fX(p,t)+3}], v{VX[cu]} offset:{t*4096}")
        for c in range(NT):
            for h in range(2):
                if att and isA:
                    va, off = VW[0], c * 4096 + cs * 2048 + h * 512
                elif att:
                    va, off = VW[c], cs * 2048 + h * 512
                else:
                    va, off = VW[0], c * 32 + cs * 5120 + h * 1280
                L.append(f"ds_read_b64_tr_b16 v[{fW(p,c)+2*h}:{fW(p,c)+2*h+1}], v{va} offset:{off}")
        return L

    def halo_reads(kk):
        L = []
        for m in range(2):
            for h in range(2):
                L.append(f"ds_read_b64_tr_b16 v[{HF+4*m+2*h}:{HF+4*m+2*h+1}], v{VWH} offset:{m*4096 + h*512}")
        L.append(f"ds_read_b128 v[{HF+8}:{HF+11}], v{VXH[kk]}")
        return L

    def mfmas(p):
        L = []
        for c in range(NT):
            for t in range(2):
                L.append(f"v_mfma_f32_32x32x16_bf16 v[{acc(c,t)}:{acc(c,t)+15}], v[{fW(p,c)}:{fW(p,c)+3}], v[{fX(p,t)}:{fX(p,t)+3}], v[{acc(c,t)}:{acc(c,t)+15}]")
        return L

    def halo_mfmas():
        return [f"v_mfma_f32_16x16x32_bf16 v[{HACC+4*m}:{HACC+4*m+3}], v[{HF+4*m}:{HF+4*m+3}], v[{HF+8}:{HF+11}], v[{HACC+4*m}:{HACC+4*m+3}]" for m in range(2)]

    def adv_w():
        L = [f"s_add_u32 s{S_WRD}, s{S_WRD}, 1", f"s_cmp_eq_u32 s{S_WRD}, 5",
             f"s_cselect_b32 s{S_DW}, {(-4*WSLOT) & 0xffffffff}, s66", f"s_cselect_b32 s{S_WRD}, 0, s{S_WRD}"]
        nw = 2 if (att and not isA) else 1
        for k in range(nw):
            L.append(f"v_add_u32 v{VW[k]}, s{S_DW}, v{VW[k]}")
        return L
    def adv_wh():
        return [f"v_add_u32 v{VWH}, s{S_DW}, v{VWH}"] if halo else []
    def adv_x():
        L = [f"s_add_u32 s{S_XRD}, s{S_XRD}, 1", f"s_cmp_eq_u32 s{S_XRD}, 3",
             f"s_cselect_b32 s{S_DX}, {(-2*XSLOT) & 0xffffffff}, s67", f"s_cselect_b32 s{S_XRD}, 0, s{S_XRD}"]
        for cu in range(4):
            L.append(f"v_add_u32 v{VX[cu]}, s{S_DX}, v{VX[cu]}")
        return L
    def adv_xh():
        return [f"v_add_u32 v{VXH[k]}, s{S_DX}, v{VXH[k]}" for k in range(2)] if halo else []

    for r in range(ACC, ACC + NT * 32):
        a(f"v_mov_b32 v{r}, 0")
    if halo:
        for r in range(HACC, HACC + 8): a(f"v_mov_b32 v{r}, 0")
    a(f"s_mov_b32 s{S_WRD}, 0\ns_mov_b32 s{S_XRD}, 0\ns_mov_b32 s57, 0\ns_mov_b32 s65, 0\ns_mov_b32 s{S_IT}, 0\ns_mov_b32 s66, {WSLOT}\ns_mov_b32 s67, {XSLOT}")
    NOUT = 10 + NXI
    if not isA:
        emit_groups(dma_w()); emit_groups(dma_x())
        emit_groups(dma_w())
        emit_groups(dma_w()); emit_groups(dma_x())
        a(f"s_waitcnt vmcnt({NOUT})")
    a("s_barrier")
    if not isA:
        emit_groups(dma_w())
    for s in reads(0, 0, 0): a(s)
    a.label(P + "_LOOP")
    for half in range(2):
        if not isA:
            l0, l1 = a.newlabel(P + "_w"), a.newlabel(P + "_w")
            if half == 0:
                a(f"s_cmp_eq_u32 s{S_IT}, 7\ns_cbranch_scc1 {l0}\ns_waitcnt vmcnt({NOUT})\ns_branch {l1}")
                a.label(l0); a("s_waitcnt vmcnt(0)"); a.label(l1)
            else:
                l2 = a.newlabel(P + "_w")
                a(f"s_cmp_lt_u32 s{S_IT}, 6\ns_cbranch_scc0 {l0}\ns_waitcnt vmcnt({NOUT})\ns_branch {l1}")
                a.label(l0)
                a(f"s_cmp_eq_u32 s{S_IT}, 6\ns_cbranch_scc0 {l2}\ns_waitcnt vmcnt(5)\ns_branch {l1}")
                a.label(l2); a("s_waitcnt vmcnt(0)"); a.label(l1)
        a("s_barrier")
        if not isA:
            ls = a.newlabel(P + "_nodma")
            a(f"s_cmp_lt_u32 s{S_IT}, 6\ns_cbranch_scc0 {ls}")
            emit_groups(dma_w())
            if half == 0: emit_groups(dma_x())
            a.label(ls)
        a("s_waitcnt lgkmcnt(0)")
        oth = reads(1, 1, 2 * half + 1)
        if halo: oth += halo_reads(half)
        interleave(a, mfmas(0), oth)
        a("s_waitcnt lgkmcnt(0)")
        pre = adv_w()
        if half == 1: pre += adv_x()
        for s in pre: a(s)
        oth = reads(0, 0, (2 * half + 2) % 4)
        mf = mfmas(1)
        if halo: mf = mf + halo_mfmas()
        interleave(a, mf, oth)
        for s in adv_wh(): a(s)
        if half == 1:
            for s in adv_xh(): a(s)
    a(f"s_add_u32 s{S_IT}, s{S_IT}, 1\ns_cmp_lt_u32 s{S_IT}, 8\ns_cbranch_scc1 {P}_LOOP")
    a("s_waitcnt lgkmcnt(0) vmcnt(0)")

    a(f"s_mov_b32 s{S_M1}, -1\ns_mov_b32 s{S_M1+1}, 0")
    for t in range(2):
        fold_b_frag(a, fX(0, t), VST + 2 * t, T, T + 1)
    for c in range(NT):
        fold_a_frag(a, fW(0, c), VCS + c, T, S_M1)
    for s in mfmas(0): a(s)
    if halo:
        fold_b_frag(a, HF + 8, VSTH, T, T + 1)
        a(f"s_mov_b64 s[{S_M1}:{S_M1+1}], 0xffff")
        for m in range(2):
            fold_a_frag(a, HF + 4 * m, VCSH + m, T, S_M1)
        for s in halo_mfmas(): a(s)

    def gu_epilogue(tiles, chunk_sreg):
        a(f"v_mul_f32 v{T}, v{VST+1}, v{VST+1}\nv_mul_f32 v{T+1}, v{VST+3}, v{VST+3}")
        a(f"v_lshlrev_b32 v{T+2}, 4, v1")
        for c in tiles:
            for t in range(2):
                b = acc(c, t)
                for r in range(8):
                    a(f"v_mul_f32 v{b+r}, v{b+r}, v{b+8+r}")
                for r in range(8):
                    a(f"v_mul_f32 v{b+r}, v{b+r}, v{T+t}")
                for i in range(4):
                    a(f"v_cvt_pk_bf16_f32 v{b+8+i}, v{b+2*i}, v{b+2*i+1}")
                a(f"s_add_u32 s{S_T0}, s{chunk_sreg}, {c*1024 + t*ACT_T}")
                a(f"buffer_store_dwordx4 v[{b+8}:{b+11}], v{T+2}, s[{S_WS}:{S_WS+3}], s{S_T0} offen")

    a(f"s_lshl_b32 s{S_T1}, s{S_RB}, 2\ns_lshl_b32 s{S_T2}, s{S_RP}, 1\ns_add_u32 s{S_T1}, s{S_T1}, s{S_T2}\ns_mul_i32 s{S_T1}, s{S_T1}, {ACT_T}")
    if not att:
        a(f"s_mul_i32 s{S_T2}, s{S_CB}, 10\ns_add_u32 s{S_T2}, s{S_T2}, 64")
        if isA: a(f"s_mul_i32 s{S_T3}, s{S_IX}, 3")
        else: a(f"s_lshl_b32 s{S_T3}, s{S_IX}, 1\ns_add_u32 s{S_T3}, s{S_T3}, 6")
        a(f"s_add_u32 s{S_T2}, s{S_T2}, s{S_T3}\ns_lshl_b32 s{S_T2}, s{S_T2}, 10\ns_add_u32 s{S_T3}, s{S_T1}, s{S_T2}")
        gu_epilogue(list(range(NT)), S_T3)
    elif not isA:
        for m in range(2):
            for r in range(4):
                a(f"v_mul_f32 v{HACC+4*m+r}, v{HACC+4*m+r}, v{VSTH+1}")
            a(f"v_cvt_pk_bf16_f32 v{HACC+4*m}, v{HACC+4*m}, v{HACC+4*m+1}\nv_cvt_pk_bf16_f32 v{HACC+4*m+1}, v{HACC+4*m+2}, v{HACC+4*m+3}")
        a(f"v_bfe_u32 v{T}, v1, 3, 1\nv_and_b32 v{T+1}, 7, v1\nv_lshrrev_b32 v{T+2}, 4, v1")
        a(f"s_lshr_b32 s{S_T0}, s{S_B}, 1\ns_lshl_b32 s{S_T0}, s{S_T0}, 3\ns_and_b32 s{S_T2}, s{S_B}, 1\ns_lshl_b32 s{S_T2}, s{S_T2}, 1\ns_add_u32 s{S_T0}, s{S_T0}, s{S_T2}")
        a(f"v_lshlrev_b32 v{T+3}, 2, v{T}\nv_and_b32 v{T+4}, 1, v{T+2}\nv_add_u32 v{T+3}, v{T+3}, v{T+4}\nv_add_u32 v{T+3}, s{S_T0}, v{T+3}")
        a(f"v_mul_u32_u24 v{T+3}, {KPL}, v{T+3}\nv_lshlrev_b32 v{T+4}, 4, v{T+1}\nv_add_u32 v{T+3}, v{T+3}, v{T+4}")
        a(f"v_lshrrev_b32 v{T+4}, 1, v{T+2}\nv_lshlrev_b32 v{T+4}, 3, v{T+4}\nv_add_u32 v{T+3}, v{T+3}, v{T+4}")
        a(f"ds_write_b64 v{T+3}, v[{HACC}:{HACC+1}] offset:{KS}")
        a(f"s_lshl_b32 s{S_T0}, s{S_T0}, 1")
        a(f"v_lshlrev_b32 v{T+3}, 3, v{T}\nv_add_u32 v{T+3}, v{T+3}, v{T+2}\nv_add_u32 v{T+3}, s{S_T0}, v{T+3}")
        a(f"v_mul_u32_u24 v{T+3}, {VPL}, v{T+3}\nv_lshlrev_b32 v{T+4}, 3, v{T+1}\nv_add_u32 v{T+3}, v{T+3}, v{T+4}")
        a(f"ds_write_b64 v{T+3}, v[{HACC+4}:{HACC+5}] offset:{VS}")
        a("s_waitcnt lgkmcnt(0)\ns_barrier")
        a(f"s_lshl_b32 s{S_T2}, s{S_CB}, 2\ns_lshl_b32 s{S_T3}, s{S_IX}, 1\ns_add_u32 s{S_T2}, s{S_T2}, s{S_T3}\ns_add_u32 s{S_T2}, s{S_T2}, 32")
        a(f"s_lshl_b32 s{S_T2}, s{S_T2}, 10\ns_add_u32 s{S_T3}, s{S_T1}, s{S_T2}")
        gu_epilogue([0, 1], S_T3)
    else:
        a(f"v_mul_f32 v{T}, {f32(QSCALE)}, v{VST+1}\nv_mul_f32 v{T+1}, {f32(QSCALE)}, v{VST+3}")
        for c in range(3):
            for t in range(2):
                b = acc(c, t)
                sc = (T + t) if c == 0 else (VST + 1 + 2 * t)
                for r in range(16):
                    a(f"v_mul_f32 v{b+r}, v{b+r}, v{sc}")
                for i in range(8):
                    a(f"v_cvt_pk_bf16_f32 v{b+i}, v{b+2*i}, v{b+2*i+1}")
                if c < 2:
                    for i in range(4):
                        a(f"v_permlane32_swap_b32 v{b+i}, v{b+4+i}")
        a(f"v_and_b32 v{T+2}, 31, v1\nv_lshrrev_b32 v{T+3}, 5, v1")
        a(f"s_lshl_b32 s{S_T0}, s{S_RP}, 5\ns_add_u32 s{S_T0}, s{S_T0}, 8")
        a(f"v_add_u32 v{T+2}, s{S_T0}, v{T+2}")
        a(f"s_mul_i32 s{S_T0}, s{S_IX}, {8*KPL}\ns_add_u32 s{S_T0}, s{S_T0}, {KS}")
        a(f"v_mul_u32_u24 v{T+4}, {2*KPL}, v{T+3}\nv_lshlrev_b32 v{T+5}, 4, v{T+2}\nv_add_u32 v{T+4}, v{T+4}, v{T+5}\nv_add_u32 v{T+4}, s{S_T0}, v{T+4}")
        VK = T + 4
        for t in range(2):
            for h in range(2):
                b = acc(1, t) + 4 * h
                a(f"ds_write_b128 v{VK}, v[{b}:{b+3}] offset:{t*4*KPL + h*KPL}")
        a(f"s_mul_i32 s{S_T0}, s{S_IX}, {16*VPL}\ns_add_u32 s{S_T0}, s{S_T0}, {VS}")
        a(f"v_mul_u32_u24 v{T+5}, {VPL}, v{T+3}\nv_lshlrev_b32 v{T+6}, 3, v{T+2}\nv_add_u32 v{T+5}, v{T+5}, v{T+6}\nv_add_u32 v{T+5}, s{S_T0}, v{T+5}")
        for t in range(2):
            for e in range(2):
                for i in range(2):
                    b = acc(2, t) + 4 * e + 2 * i
                    a(f"ds_write_b64 v{T+5}, v[{b}:{b+1}] offset:{t*8*VPL + e*4*VPL + 2*i*VPL}")
        a("s_waitcnt lgkmcnt(0)\ns_barrier")
        a(f"v_subrev_u32 v{VK}, 128, v{VK}")
        KD = 160
        def kd(t, d): return KD + (t * 2 + (d - 1)) * 8
        for t in range(2):
            for d in (1, 2):
                for h in range(2):
                    a(f"ds_read_b128 v[{kd(t,d)+4*h}:{kd(t,d)+4*h+3}], v{VK} offset:{t*4*KPL + h*KPL + 128 - 64*d}")
        a(f"v_lshrrev_b32 v{T+6}, 4, v1\nv_bfe_u32 v{T+7}, v1, 2, 2\nv_and_b32 v{T+8}, 3, v1")
        a(f"v_and_b32 v{T+9}, 1, v{T+6}\nv_lshlrev_b32 v{T+9}, 4, v{T+9}\nv_lshlrev_b32 v{T+8}, 2, v{T+8}")
        a(f"v_add_u32 v{T+9}, v{T+9}, v{T+8}\nv_add_u32 v{T+9}, v{T+9}, v{T+7}")
        a(f"s_lshl_b32 s{S_T2}, s{S_RP}, 5\nv_add_u32 v{T+9}, s{S_T2}, v{T+9}\nv_lshlrev_b32 v{T+9}, 3, v{T+9}")
        a(f"v_lshrrev_b32 v{T+6}, 1, v{T+6}\nv_mul_u32_u24 v{T+6}, {4*VPL}, v{T+6}\nv_add_u32 v{T+9}, v{T+9}, v{T+6}\nv_add_u32 v{T+9}, s{S_T0}, v{T+9}")
        VV = T + 9
        VT = 192
        def vt(t, d, dd): return VT + ((t * 3 + d) * 4 + dd) * 2
        a(f"s_or_b32 s{S_T2}, s{S_RB}, s{S_RP}\ns_cmp_eq_u32 s{S_T2}, 0\ns_cselect_b32 s{S_T2}, {f32(-1e9)}, 0")
        a(f"v_and_b32 v{T+10}, 31, v1\nv_mov_b32 v{T+11}, s{S_T2}")
        a(f"v_cmp_gt_u32 vcc, 4, v{T+10}\nv_cndmask_b32 v{T+12}, 0, v{T+11}, vcc")
        a(f"v_cmp_gt_u32 vcc, 8, v{T+10}\nv_cndmask_b32 v{T+13}, 0, v{T+11}, vcc")
        SB = acc(2, 0)
        def S(t, d): return SB + (t * 3 + d) * 4
        for t in range(2):
            for r in range(4):
                a(f"v_mov_b32 v{S(t,0)+r}, 0\nv_mov_b32 v{S(t,1)+r}, v{T+12}\nv_mov_b32 v{S(t,2)+r}, v{T+13}")
        a("s_waitcnt lgkmcnt(0)")
        for t in range(2):
            for d in range(3):
                for dd in range(4):
                    a(f"ds_read_b64_tr_b16 v[{vt(t,d,dd)}:{vt(t,d,dd)+1}], v{VV} offset:{t*8*VPL + dd*VPL + 64 - 32*d}")
        for ks in range(4):
            for t in range(2):
                q = acc(0, t) + 2 * ks
                for d in range(3):
                    ka = (acc(1, t) if d == 0 else kd(t, d)) + 2 * ks
                    a(f"v_mfma_f32_4x4x4_16b_bf16 v[{S(t,d)}:{S(t,d)+3}], v[{ka}:{ka+1}], v[{q}:{q+1}], v[{S(t,d)}:{S(t,d)+3}]")
        a(f"s_mov_b32 s{S_M1}, 0xeeeeeeee\ns_mov_b32 s{S_M1+1}, 0xeeeeeeee\ns_mov_b32 s{S_M2}, 0xcccccccc\ns_mov_b32 s{S_M2+1}, 0xcccccccc\ns_mov_b32 s{S_M3}, 0x88888888\ns_mov_b32 s{S_M3+1}, 0x88888888")
        a(f"v_mov_b32 v{T+14}, 0xffff\nv_mov_b32 v{T+18}, 0xffffffff")
        a(f"v_cndmask_b32 v{T+14}, v{T+14}, v{T+18}, s[{S_M1}:{S_M1+1}]")
        a(f"v_mov_b32 v{T+15}, 0\nv_mov_b32 v{T+19}, 0xffff\nv_cndmask_b32 v{T+15}, v{T+15}, v{T+19}, s[{S_M2}:{S_M2+1}]\nv_cndmask_b32 v{T+15}, v{T+15}, v{T+18}, s[{S_M3}:{S_M3+1}]")
        a(f"v_not_b32 v{T+16}, v{T+14}\nv_not_b32 v{T+17}, v{T+15}")
        for t in range(2):
            s0, s1, s2 = S(t, 0), S(t, 1), S(t, 2)
            m = acc(1, t) + 8
            for r, mk in ((1, S_M1), (2, S_M2), (3, S_M3)):
                a(f"v_cndmask_b32 v{s0+r}, v{s2+r}, v{s0+r}, s[{mk}:{mk+1}]")
            a(f"v_max3_f32 v{m}, v{s0}, v{s0+1}, v{s0+2}\nv_max3_f32 v{m+1}, v{s0+3}, v{s1}, v{s1+1}")
            a(f"v_max3_f32 v{m}, v{s1+2}, v{s1+3}, v{m}\nv_max_f32 v{m}, v{m}, v{m+1}")
            vals = [s0 + r for r in range(4)] + [s1 + r for r in range(4)]
            for v in vals: a(f"v_sub_f32 v{v}, v{v}, v{m}")
            for v in vals: a(f"v_exp_f32 v{v}, v{v}")
            a(f"v_add_f32 v{m}, v{s0}, v{s0+1}\nv_add_f32 v{m+1}, v{s0+2}, v{s0+3}\nv_add_f32 v{m+2}, v{s1}, v{s1+1}\nv_add_f32 v{m+3}, v{s1+2}, v{s1+3}")
            a(f"v_add_f32 v{m}, v{m}, v{m+1}\nv_add_f32 v{m+2}, v{m+2}, v{m+3}\nv_add_f32 v{m}, v{m}, v{m+2}")
            a(f"v_rcp_f32 v{m}, v{m}")
            for v in vals: a(f"v_mul_f32 v{v}, v{v}, v{m}")
            pb = acc(0, t) + 8
            a(f"v_cvt_pk_bf16_f32 v{pb+6}, v{s0}, v{s0+1}\nv_cvt_pk_bf16_f32 v{pb+7}, v{s0+2}, v{s0+3}")
            a(f"v_cvt_pk_bf16_f32 v{pb+2}, v{s1}, v{s1+1}\nv_cvt_pk_bf16_f32 v{pb+3}, v{s1+2}, v{s1+3}")
            a(f"v_and_b32 v{pb}, v{pb+6}, v{T+14}\nv_and_b32 v{pb+1}, v{pb+7}, v{T+15}")
            a(f"v_and_b32 v{pb+4}, v{pb+6}, v{T+16}\nv_and_b32 v{pb+5}, v{pb+7}, v{T+17}")
        a("s_waitcnt lgkmcnt(0)")
        def O(t, dd): return KD + (t * 4 + dd) * 4
        for d in range(3):
            for t in range(2):
                pb = acc(0, t) + 8 + 2 * d
                for dd in range(4):
                    cin = "0" if d == 0 else f"v[{O(t,dd)}:{O(t,dd)+3}]"
                    a(f"v_mfma_f32_4x4x4_16b_bf16 v[{O(t,dd)}:{O(t,dd)+3}], v[{vt(t,d,dd)}:{vt(t,d,dd)+1}], v[{pb}:{pb+1}], {cin}")
        a(f"v_and_b32 v{T}, 31, v1\nv_lshlrev_b32 v{T}, 4, v{T}\nv_lshrrev_b32 v{T+1}, 5, v1\nv_lshlrev_b32 v{T+1}, 10, v{T+1}\nv_add_u32 v{T}, v{T}, v{T+1}")
        a(f"s_lshl_b32 s{S_T2}, s{S_CB}, 2\ns_lshl_b32 s{S_T3}, s{S_IX}, 1\ns_add_u32 s{S_T2}, s{S_T2}, s{S_T3}\ns_lshl_b32 s{S_T2}, s{S_T2}, 10\ns_add_u32 s{S_T3}, s{S_T1}, s{S_T2}")
        for t in range(2):
            ob = acc(2, t)
            for k, dd in enumerate((0, 2, 1, 3)):
                a(f"v_cvt_pk_bf16_f32 v{ob+2*k}, v{O(t,dd)}, v{O(t,dd)+1}\nv_cvt_pk_bf16_f32 v{ob+2*k+1}, v{O(t,dd)+2}, v{O(t,dd)+3}")
            a(f"s_add_u32 s{S_T0}, s{S_T3}, {t*ACT_T}")
            a(f"buffer_store_dwordx4 v[{ob}:{ob+3}], v{T}, s[{S_WS}:{S_WS+3}], s{S_T0} offen")
            a(f"buffer_store_dwordx4 v[{ob+4}:{ob+7}], v{T}, s[{S_WS}:{S_WS+3}], s{S_T0} offen offset:512")
    a("s_waitcnt vmcnt(0)\ns_endpgm")

def gen_k1(name):
    a = Asm()
    kernel_header(a, name)
    a("s_cmp_ge_u32 s2, 256\ns_cbranch_scc1 K1_END")
    a("s_load_dwordx2 s[4:5], s[0:1], 0\ns_load_dwordx2 s[6:7], s[0:1], 8\ns_load_dwordx2 s[8:9], s[0:1], 32\n"
      "s_load_dwordx2 s[10:11], s[0:1], 40\ns_load_dwordx2 s[12:13], s[0:1], 72")
    a("v_and_b32 v1, 63, v0\nv_lshrrev_b32 v2, 6, v0")
    a(f"v_readfirstlane_b32 s{S_WAVE}, v2")
    a(f"s_and_b32 s3, s2, 7\ns_lshr_b32 s{S_T0}, s2, 3")
    a(f"s_and_b32 s{S_RB}, s3, 1\ns_lshl_b32 s{S_RB}, s{S_RB}, 3\ns_and_b32 s{S_T1}, s{S_T0}, 7\ns_add_u32 s{S_RB}, s{S_RB}, s{S_T1}")
    a(f"s_lshr_b32 s{S_T0}, s{S_T0}, 3")
    a(f"s_lshr_b32 s3, s3, 1\ns_lshl_b32 s3, s3, 1\ns_and_b32 s{S_T1}, s{S_T0}, 1\ns_add_u32 s{S_CB}, s3, s{S_T1}")
    a(f"s_lshr_b32 s{S_T2}, s{S_T0}, 1")
    a(f"s_and_b32 s{S_B}, s{S_WAVE}, 3\ns_lshr_b32 s{S_RP}, s{S_B}, 1\ns_and_b32 s{S_IX}, s{S_B}, 1")
    a("s_waitcnt lgkmcnt(0)")
    srd(a, S_X, 4, 2048 * 1024)
    srd(a, S_W0, 6, 512 * 3072)
    srd(a, S_WG, 8, 512 * 3584)
    srd(a, S_WU, 10, 512 * 3584)
    srd(a, S_WS, 12, WS_SIZE)
    a(f"s_cmp_lt_u32 s{S_WAVE}, 4\ns_cselect_b32 s{S_T3}, 0, 1\ns_lshl_b32 s{S_T2}, s{S_T2}, 1\ns_add_u32 s{S_T2}, s{S_T2}, s{S_T3}")
    a(f"s_cmp_eq_u32 s{S_T2}, 1\ns_cbranch_scc1 K1attB")
    a(f"s_cmp_eq_u32 s{S_T2}, 2\ns_cbranch_scc1 K1ffnA")
    a(f"s_cmp_eq_u32 s{S_T2}, 3\ns_cbranch_scc1 K1ffnB")
    gen_k1_role(a, 'att', 'A')
    gen_k1_role(a, 'att', 'B')
    gen_k1_role(a, 'ffn', 'A')
    gen_k1_role(a, 'ffn', 'B')
    a.label("K1_END")
    a("s_endpgm")
    a.finalize()
    return a, kernel_desc(name, 256, 96)

K2_RING = 10
K2_WAVE_LDS = K2_RING * 2048
PSTR = 272
PWAVE = 64 * PSTR
K2_LDS = max(8 * K2_WAVE_LDS, 8 * PWAVE)

def gen_k2(name):
    a = Asm()
    kernel_header(a, name)
    a("s_cmp_ge_u32 s2, 256\ns_cbranch_scc1 K2_END")
    a("s_load_dwordx2 s[4:5], s[0:1], 0\ns_load_dwordx2 s[6:7], s[0:1], 16\ns_load_dwordx2 s[8:9], s[0:1], 48\n"
      "s_load_dwordx2 s[10:11], s[0:1], 56\ns_load_dwordx2 s[12:13], s[0:1], 72")
    a("v_and_b32 v1, 63, v0\nv_lshrrev_b32 v2, 6, v0")
    a("v_readfirstlane_b32 s38, v2")
    a("s_and_b32 s3, s2, 7\ns_lshl_b32 s36, s3, 2\ns_lshr_b32 s3, s2, 3\ns_and_b32 s40, s3, 3\ns_add_u32 s36, s36, s40\ns_lshr_b32 s37, s2, 5")
    a("s_waitcnt lgkmcnt(0)")
    srd(a, 16, 4, 2048 * 1024)
    srd(a, 20, 6, 512 * 1024)
    srd(a, 24, 8, 1792 * 1024)
    srd(a, 28, 10, 2048 * 1024)
    srd(a, 32, 12, WS_SIZE)
    T = 2
    ACC = 16
    def acc(rt, c): return ACC + (rt * 2 + c) * 16
    ACTR = 80
    def act(i, rt): return ACTR + i * 8 + rt * 4
    WF = 224
    def wf(p, c): return WF + p * 8 + c * 4
    VDW, VACT, VR0, VR1, VRES = 8, 9, 10, 11, 12
    a(f"v_lshrrev_b32 v{T}, 3, v1\nv_and_b32 v{T+1}, 3, v{T}\nv_lshrrev_b32 v{T+2}, 2, v{T}\nv_lshlrev_b32 v{T+2}, 3, v{T+2}\nv_add_u32 v{T+1}, v{T+1}, v{T+2}")
    a(f"v_lshlrev_b32 v{T+1}, 10, v{T+1}")
    a(f"v_bfe_u32 v{T+2}, v{T}, 1, 1\nv_lshlrev_b32 v{T+2}, 2, v{T+2}\nv_and_b32 v{T+3}, 7, v1\nv_xor_b32 v{T+2}, v{T+2}, v{T+3}\nv_lshlrev_b32 v{T+2}, 4, v{T+2}")
    a(f"v_add_u32 v{VDW}, v{T+1}, v{T+2}")
    a(f"v_lshlrev_b32 v{VACT}, 4, v1")
    a(f"v_lshrrev_b32 v{T}, 4, v1\nv_bfe_u32 v{T+1}, v1, 2, 2\nv_and_b32 v{T+2}, 3, v1")
    a(f"v_lshrrev_b32 v{T+3}, 1, v{T}\nv_lshlrev_b32 v{T+3}, 3, v{T+3}\nv_add_u32 v{T+3}, v{T+3}, v{T+1}\nv_lshlrev_b32 v{T+3}, 7, v{T+3}")
    a(f"v_lshrrev_b32 v{T+1}, 1, v{T+1}\nv_lshlrev_b32 v{T+1}, 6, v{T+1}\nv_add_u32 v{T+3}, v{T+3}, v{T+1}")
    a(f"v_and_b32 v{T}, 1, v{T}\nv_lshlrev_b32 v{T}, 5, v{T}\nv_add_u32 v{T+3}, v{T+3}, v{T}\nv_lshlrev_b32 v{T+2}, 3, v{T+2}\nv_add_u32 v{T+3}, v{T+3}, v{T+2}")
    a(f"s_mul_i32 s41, s38, {K2_WAVE_LDS}")
    a(f"v_add_u32 v{VR0}, s41, v{T+3}\nv_xor_b32 v{VR1}, 64, v{VR0}")
    a(f"v_and_b32 v{T}, 31, v1\nv_lshlrev_b32 v{T}, 11, v{T}\nv_lshrrev_b32 v{T+1}, 5, v1\nv_lshlrev_b32 v{T+1}, 4, v{T+1}\nv_add_u32 v7, v{T}, v{T+1}")
    a("s_lshl_b32 s42, s36, 16\ns_and_b32 s43, s38, 1\ns_lshl_b32 s43, s43, 10\ns_add_u32 s42, s42, s43")
    a("s_lshl_b32 s43, s37, 7\ns_add_u32 s42, s42, s43\ns_lshr_b32 s43, s38, 1\ns_lshl_b32 s43, s43, 5\ns_add_u32 s42, s42, s43")
    a(f"buffer_load_dwordx4 v[{VRES}:{VRES+3}], v7, s[16:19], s42 offen")
    a(f"s_mul_i32 s44, s36, {2*ACT_T}\ns_lshl_b32 s45, s38, 10\ns_add_u32 s44, s44, s45")
    a("s_lshl_b32 s46, s38, 14\ns_lshl_b32 s45, s37, 7\ns_add_u32 s46, s46, s45")
    queue = ['res']
    def dma(i):
        srdn = 20 if i < 4 else 24
        ii = i if i < 4 else i - 4
        slot = i % K2_RING
        for n in range(2):
            a(f"s_add_u32 m0, s41, {slot*2048 + n*1024}")
            a(f"s_add_u32 s47, s46, {ii*8*16384 + n*4096}")
            a(f"buffer_load_dwordx4 v{VDW}, s[{srdn}:{srdn+3}], s47 offen lds")
            queue.append(('D', i))
    def actload(i):
        for rt in range(2):
            a(f"s_add_u32 s47, s44, {i*8*1024 + rt*ACT_T}")
            a(f"buffer_load_dwordx4 v[{act(i,rt)}:{act(i,rt)+3}], v{VACT}, s[32:35], s47 offen")
            queue.append(('A', i))
    for i in range(K2_RING):
        dma(i); actload(i)
    for i in range(K2_RING, 18):
        actload(i)
    for r in range(ACC, ACC + 64): a(f"v_mov_b32 v{r}, 0")
    def wait_for(tags):
        last = max(k for k, q in enumerate(queue) if q in tags)
        n = len(queue) - 1 - last
        a(f"s_waitcnt vmcnt({min(n, 63)})")
    def wreads(p, i):
        slot = i % K2_RING
        L = []
        for c in range(2):
            for h in range(2):
                L.append(f"ds_read_b64_tr_b16 v[{wf(p,c)+2*h}:{wf(p,c)+2*h+1}], v{VR0 if c == 0 else VR1} offset:{slot*2048 + h*512}")
        return L
    wait_for([('D', 0)])
    for s in wreads(0, 0): a(s)
    for i in range(18):
        p = i & 1
        if i + 1 < 18:
            wait_for([('D', i + 1), ('A', i)])
        else:
            wait_for([('A', i)])
        a("s_waitcnt lgkmcnt(0)")
        if i + K2_RING < 18:
            dma(i + K2_RING)
        mf = []
        for rt in range(2):
            for c in range(2):
                mf.append(f"v_mfma_f32_32x32x16_bf16 v[{acc(rt,c)}:{acc(rt,c)+15}], v[{wf(p,c)}:{wf(p,c)+3}], v[{act(i,rt)}:{act(i,rt)+3}], v[{acc(rt,c)}:{acc(rt,c)+15}]")
        oth = wreads(1 - p, i + 1) if i + 1 < 18 else []
        interleave(a, mf, oth)
    a("s_barrier")
    a(f"v_and_b32 v{T}, 31, v1\nv_mul_u32_u24 v{T}, {PSTR}, v{T}\nv_lshrrev_b32 v{T+1}, 5, v1\nv_lshlrev_b32 v{T+1}, 7, v{T+1}\nv_add_u32 v{T}, v{T}, v{T+1}")
    a(f"s_mul_i32 s47, s38, {PWAVE}\nv_add_u32 v{T+2}, s47, v{T}")
    for rt in range(2):
        for c in range(2):
            for q in range(4):
                b = acc(rt, c) + 4 * q
                a(f"ds_write_b128 v{T+2}, v[{b}:{b+3}] offset:{rt*32*PSTR + (4*c+q)*16}")
    a("s_waitcnt lgkmcnt(0)\ns_barrier")
    a(f"v_and_b32 v{T}, 31, v1\nv_mul_u32_u24 v{T}, {PSTR}, v{T}\nv_lshrrev_b32 v{T+1}, 5, v1\nv_lshlrev_b32 v{T+1}, 4, v{T+1}\nv_add_u32 v{T}, v{T}, v{T+1}")
    a(f"s_and_b32 s47, s38, 1\ns_mul_i32 s47, s47, {32*PSTR}\ns_lshr_b32 s48, s38, 1\ns_lshl_b32 s48, s48, 5\ns_add_u32 s47, s47, s48")
    a(f"v_add_u32 v{T}, s47, v{T}")
    a(f"v_add_u32 v{T+1}, {4*PWAVE}, v{T}")
    for p in range(8):
        va = T if p < 4 else T + 1
        for h in range(2):
            a(f"ds_read_b128 v[{80+p*8+h*4}:{80+p*8+h*4+3}], v{va} offset:{(p%4)*PWAVE + h*128}")
    for i in range(4):
        a(f"v_lshlrev_b32 v{16+2*i}, 16, v{VRES+i}\nv_and_b32 v{17+2*i}, 0xffff0000, v{VRES+i}")
    a("s_waitcnt lgkmcnt(0)")
    for p in range(8):
        for k in range(8):
            a(f"v_add_f32 v{16+k}, v{16+k}, v{80+p*8+k}")
    for i in range(4):
        a(f"v_cvt_pk_bf16_f32 v{24+i}, v{16+2*i}, v{17+2*i}")
    a("buffer_store_dwordx4 v[24:27], v7, s[28:31], s42 offen")
    a("s_waitcnt vmcnt(0)")
    a.label("K2_END")
    a("s_endpgm")
    a.finalize()
    return a, kernel_desc(name, 256, 96)


def build(path):
    hdr = open("cdna_kernels/" + NAME + ".s.ref").read().split("\n")
    comments = [l for l in hdr if l.startswith(";") and "@launch" not in l and "Override launch" not in l and "grid=ceil" not in l]
    k0, d0 = gen_k0("k0_kernel")
    k1, d1 = gen_k1("k1_kernel")
    k2, d2 = gen_k2("k2_kernel")
    out = "\n".join(comments) + "\n"
    out += "; @launch kernel=k0_kernel grid=(256,1,1) block=(512,1,1) lds=4096\n"
    out += f"; @launch kernel=k1_kernel grid=(256,1,1) block=(512,1,1) lds={K1_LDS}\n"
    out += f"; @launch kernel=k2_kernel grid=(256,1,1) block=(512,1,1) lds={K2_LDS}\n"
    out += '.amdgcn_target "amdgcn-amd-amdhsa--gfx950"\n.text\n'
    out += k0.text() + k1.text() + k2.text()
    out += '.section .rodata,"a"\n.p2align 6\n' + d0 + ".p2align 6\n" + d1 + ".p2align 6\n" + d2
    open(path, "w").write(out)
    print("instr counts", k0.count(), k1.count(), k2.count(), "pads", getattr(k0, 'npad', 0), getattr(k1, 'npad', 0), getattr(k2, 'npad', 0))

if __name__ == "__main__":
    build(sys.argv[1] if len(sys.argv) > 1 else "cdna_kernels/" + NAME + ".s")
```

```python
import re

def parse_regs(tok):
    tok = tok.strip()
    m = re.fullmatch(r'([vsa])(\d+)', tok)
    if m:
        return [(m.group(1), int(m.group(2)))]
    m = re.fullmatch(r'([vsa])\[(\d+):(\d+)\]', tok)
    if m:
        return [(m.group(1), i) for i in range(int(m.group(2)), int(m.group(3)) + 1)]
    if tok in ('vcc', 'vcc_lo', 'vcc_hi'):
        return [('s', 'vcc')]
    if tok in ('exec', 'exec_lo', 'exec_hi'):
        return [('s', 'exec')]
    if tok == 'm0':
        return [('s', 'm0')]
    return []

TRANS = ('v_exp_f32', 'v_log_f32', 'v_rcp_f32', 'v_rsq_f32', 'v_sqrt_f32', 'v_sin_f32', 'v_cos_f32')

class Ins:
    __slots__ = ('text', 'op', 'ops', 'mods', 'kind', 'vw', 'vr', 'sw', 'sr', 'passes', 'mA', 'mB', 'mC', 'dpp',
                 'is_trans', 'wide_store_data', 'is_lds_dma', 'nops', 'is_dot', 'addr_regs', 'load_dst')

    def __init__(self, text):
        self.text = text
        t = text.split(';')[0].strip()
        parts = t.split(None, 1)
        self.op = parts[0]
        rest = parts[1] if len(parts) > 1 else ''
        xm = ''
        mm = re.search(r'\s(op_sel|op_sel_hi|neg_lo|neg_hi):', rest)
        if mm:
            xm = rest[mm.start():].strip(); rest = rest[:mm.start()]
        toks = [x.strip() for x in rest.split(',')] if rest else []
        self.mods = ''
        if toks:
            last = toks[-1].split(None, 1)
            toks[-1] = last[0]
            self.mods = last[1] if len(last) > 1 else ''
        self.ops = toks
        if xm: self.mods = (self.mods + ' ' + xm).strip()
        self.vw = set(); self.vr = set(); self.sw = set(); self.sr = set()
        self.passes = 0; self.mA = set(); self.mB = set(); self.mC = set()
        self.dpp = False; self.is_trans = False; self.wide_store_data = set(); self.is_lds_dma = False
        self.nops = 0; self.is_dot = False; self.load_dst = set()
        self.kind = 'other'
        self.classify()

    def R(self, i):
        return parse_regs(self.ops[i]) if i < len(self.ops) else []

    def addr(self, regs, write=False):
        for r in regs:
            if r[0] in ('v', 'a'):
                (self.vw if write else self.vr).add(r)
            else:
                (self.sw if write else self.sr).add(r)

    def classify(self):
        op = self.op
        if op == 's_nop':
            self.kind = 'nop'; self.nops = int(self.ops[0], 0) + 1
            return
        if op.startswith('v_mfma'):
            self.kind = 'mfma'
            if '32x32x16' in op or '32x32x8' in op: self.passes = 8
            elif '16x16x32' in op or '16x16x16' in op: self.passes = 4
            elif '4x4x4' in op: self.passes = 2
            else: raise ValueError(op)
            self.addr(self.R(0), True)
            self.mA = set(self.R(1)); self.mB = set(self.R(2)); self.mC = set(self.R(3))
            self.vr |= self.mA | self.mB | self.mC
            return
        if op.startswith('v_'):
            self.kind = 'valu'
            base = op.replace('_e32', '').replace('_e64', '').replace('_dpp', '').replace('_sdwa', '')
            self.is_trans = base in TRANS
            self.is_dot = base.startswith('v_dot')
            self.dpp = any(k in self.mods for k in ('row_shr', 'row_shl', 'row_ror', 'wave_shr', 'wave_shl', 'row_bcast', 'quad_perm', 'row_mirror', 'row_half_mirror', 'wave_ror', 'wave_rol', 'row_newbcast')) or op.endswith('_dpp')
            if base.startswith('v_cmp'):
                self.addr(self.R(0), True)
                for i in range(1, len(self.ops)): self.addr(self.R(i))
            elif base in ('v_readfirstlane_b32', 'v_readlane_b32'):
                self.kind = 'readlane'
                self.addr(self.R(0), True)
                for i in range(1, len(self.ops)): self.addr(self.R(i))
            elif base.startswith('v_permlane') and 'swap' in base:
                self.kind = 'permlane'
                self.addr(self.R(0), True); self.addr(self.R(1), True)
                self.addr(self.R(0)); self.addr(self.R(1))
            elif base in ('v_add_co_u32', 'v_sub_co_u32', 'v_addc_co_u32', 'v_subb_co_u32', 'v_subrev_co_u32'):
                self.addr(self.R(0), True); self.addr(self.R(1), True)
                for i in range(2, len(self.ops)): self.addr(self.R(i))
            else:
                self.addr(self.R(0), True)
                for i in range(1, len(self.ops)): self.addr(self.R(i))
                if base in ('v_fmac_f32', 'v_dot2c_f32_bf16', 'v_mac_f32', 'v_writelane_b32') or self.dpp:
                    self.addr(self.R(0))
                if base == 'v_cndmask_b32' and len(self.ops) == 3:
                    self.sr.add(('s', 'vcc'))
            return
        if op.startswith('ds_'):
            self.kind = 'ds'
            if op.startswith('ds_read') or op.startswith('ds_bpermute') or op.startswith('ds_permute') or op.startswith('ds_swizzle') or '_rtn_' in op:
                self.addr(self.R(0), True); self.load_dst = set(self.R(0))
                for i in range(1, len(self.ops)): self.addr(self.R(i))
            else:
                for i in range(len(self.ops)): self.addr(self.R(i))
            return
        if op.startswith('buffer_') or op.startswith('global_'):
            self.kind = 'vmem'
            words = self.mods.split()
            lds = ('lds' in words) or ('_lds_' in op)
            self.is_lds_dma = lds
            if op in ('buffer_wbl2', 'buffer_inv'):
                return
            if 'load' in op and not lds:
                self.addr(self.R(0), True); self.load_dst = set(self.R(0))
                for i in range(1, len(self.ops)): self.addr(self.R(i))
            elif 'atomic' in op and ('sc0' in words):
                self.addr(self.R(0), True); self.load_dst = set(self.R(0))
                for i in range(0, len(self.ops)): self.addr(self.R(i))
            else:
                for i in range(len(self.ops)): self.addr(self.R(i))
                if 'store' in op and ('x4' in op or 'x3' in op):
                    d = self.R(0) if op.startswith('buffer_') else self.R(1)
                    self.wide_store_data = set(d)
            if lds: self.sr.add(('s', 'm0'))
            return
        if op.startswith('s_'):
            self.kind = 'salu'
            if op.startswith(('s_cmp', 's_cbranch', 's_branch', 's_waitcnt', 's_barrier', 's_endpgm', 's_sleep', 's_setprio', 's_bitcmp')):
                for i in range(len(self.ops)): self.addr(self.R(i))
            elif op.startswith('s_load') or op.startswith('s_buffer_load') or op.startswith('s_memtime') or op.startswith('s_memrealtime'):
                self.kind = 'smem'
                self.addr(self.R(0), True)
                for i in range(1, len(self.ops)): self.addr(self.R(i))
            else:
                self.addr(self.R(0), True)
                for i in range(1, len(self.ops)): self.addr(self.R(i))
                if 'saveexec' in op:
                    self.sw.add(('s', 'exec'))
            return
        raise ValueError("unknown instruction " + self.text)


def need_states(prev, cur):
    n = 0
    pk, ck = prev.kind, cur.kind
    valu_like_prev = pk in ('valu', 'readlane', 'permlane')
    if valu_like_prev:
        w = prev.vw
        if w:
            if ck == 'mfma' and (w & cur.vr): n = max(n, 2)
            if cur.dpp and (w & cur.vr): n = max(n, 2)
            if ck == 'permlane' and (w & cur.vr): n = max(n, 2)
            if ck == 'readlane' and (w & cur.vr): n = max(n, 1)
            if prev.is_trans and ck in ('valu', 'permlane', 'readlane') and not cur.is_trans and (w & cur.vr): n = max(n, 1)
            if prev.is_trans and ck in ('valu',) and cur.is_trans and (w & cur.vr): n = max(n, 1)
            if prev.is_dot and ck in ('valu', 'permlane', 'readlane', 'mfma', 'vmem', 'ds') and (w & (cur.vr | cur.vw)):
                if not (cur.op == prev.op and not (w & (cur.vr - w))):
                    n = max(n, 3)
                else:
                    srcs = set()
                    for i in (1, 2): srcs |= set(cur.R(i))
                    if w & srcs: n = max(n, 3)
        sw = prev.sw
        if sw:
            if ck in ('valu', 'permlane') and (sw & cur.sr): n = max(n, 2)
            if ck == 'readlane' and (sw & cur.sr): n = max(n, 4)
            if ck == 'vmem' and (sw & cur.sr): n = max(n, 5)
            if ck in ('salu', 'smem') and (sw & cur.sr): n = max(n, 0)
    if pk == 'mfma':
        D = prev.vw
        p = prev.passes
        t_read = {2: 5, 4: 8, 8: 12}[p]
        if ck == 'mfma':
            if D & (cur.mA | cur.mB): n = max(n, t_read)
            if D & cur.mC:
                if cur.mC == D and cur.passes == p:
                    n = max(n, 2 if p == 2 else 0)
                else:
                    n = max(n, {2: 4, 4: 6, 8: 10}[p])
            elif D & cur.vw:
                n = max(n, {2: 4, 4: 6, 8: 10}[p])
        elif ck in ('valu', 'readlane', 'permlane', 'vmem', 'ds'):
            if D & (cur.vr | cur.vw): n = max(n, t_read)
        if ck in ('valu', 'permlane') and (prev.mC & cur.vw):
            n = max(n, {2: 1, 4: 3, 8: 7}[p])
    if pk == 'salu' and ('s', 'm0') in prev.sw and cur.is_lds_dma:
        n = max(n, 1)
    if prev.wide_store_data:
        if ck in ('valu', 'permlane') and (prev.wide_store_data & cur.vw): n = max(n, 2)
        elif prev.wide_store_data & cur.vw: n = max(n, 1)
    return n


class Asm:
    def __init__(self):
        self.items = []
        self.uid = 0

    def __call__(self, text):
        for line in text.split('\n'):
            line = line.strip()
            if not line:
                continue
            if line.startswith(';'):
                self.items.append(('c', line))
            elif line.endswith(':'):
                self.items.append(('l', line[:-1]))
            else:
                self.items.append(('i', Ins(line)))

    def label(self, name):
        self.items.append(('l', name))

    def raw(self, text):
        self.items.append(('c', text))

    def newlabel(self, base):
        self.uid += 1
        return f"{base}_{self.uid}"

    def _states(self, ins):
        return ins.nops if ins.kind == 'nop' else 1

    def finalize(self, window=24):
        for _ in range(10):
            if not self._pad_pass(window):
                return
        raise RuntimeError("hazard padding did not converge")

    def _maps(self):
        items = self.items
        labels = {it[1]: i for i, it in enumerate(items) if it[0] == 'l'}
        branch_to = {}
        for i, it in enumerate(items):
            if it[0] == 'i' and (it[1].op.startswith('s_cbranch') or it[1].op == 's_branch'):
                tgt = it[1].ops[0]
                branch_to.setdefault(labels[tgt], []).append(i)
        return branch_to

    def _pad_pass(self, window):
        changed = False
        branch_to = self._maps()
        i = 0
        while i < len(self.items):
            items = self.items
            it = items[i]
            if it[0] != 'i' or it[1].kind == 'nop':
                i += 1
                continue
            cur = it[1]
            def preds(k):
                res = []
                if items[k][0] == 'l':
                    res += branch_to.get(k, [])
                if k > 0:
                    p = items[k - 1]
                    if not (p[0] == 'i' and p[1].op in ('s_branch', 's_endpgm')):
                        res.append(k - 1)
                return res
            worst = 0
            why = None
            stack = [(p, 0) for p in preds(i)]
            seen = {}
            while stack:
                j, dist = stack.pop()
                if dist >= window:
                    continue
                if seen.get(j, 1 << 30) <= dist:
                    continue
                seen[j] = dist
                pj = items[j]
                nd = dist
                if pj[0] == 'i':
                    need = need_states(pj[1], cur)
                    if need - dist > worst:
                        worst = need - dist
                        why = pj[1].text
                    nd = dist + self._states(pj[1])
                for p in preds(j):
                    stack.append((p, nd))
            if worst > 0:
                pad = []
                w = worst
                while w > 0:
                    k = min(w, 8)
                    pad.append(('i', Ins(f"s_nop {k-1}")))
                    w -= k
                self.items[i:i] = pad
                self.npad = getattr(self, 'npad', 0) + worst
                branch_to = self._maps()
                changed = True
                i += len(pad)
            i += 1
        return changed

    def text(self):
        out = []
        for k, v in self.items:
            if k == 'i': out.append("    " + v.text)
            elif k == 'l': out.append(v + ":")
            else: out.append(v)
        return "\n".join(out) + "\n"

    def count(self):
        return sum(1 for k, v in self.items if k == 'i')
```

```python
import sys, struct
from asmfw import Asm

NAME = "parallel_sum__sliding_local_dilated__glu_gated_bilinear__prompt"
KNAME = NAME + "_kernel"

ACT_T = 144 * 1024
STATS_OFF = 0x900000
CSP_OFF = 0x910000
FLAG_OFF = 0x990000
EP_OFF = 0x991000
EPC_OFF = 0x992000
PROF_OFF = 0xA00000
WS_SIZE = 0x1000000
LCG_A, LCG_C = 0x9E3779B1, 0x7F4A7C15

WSLOT = 20608
XRING = 5 * WSLOT
XSLOT = 18432
MISC = XRING + 3 * XSLOT
LDS_SIZE = 163840
CNT_H, CNT_O, RDY_H, RDY_O = MISC, MISC + 4, MISC + 8, MISC + 12
HST = MISC + 64
FFN_UOFF = 10272
KS = 0
VS = XRING + XSLOT
KPL = 72 * 16
VPL = 72 * 8
BLK = [20608, XRING + 2 * XSLOT, 20608 + 16384, 20608 + 2 * 16384, 20608 + 3 * 16384, 20608 + 4 * 16384, 20608 + 5 * 16384]
BLK_STEP = [11, 11, 12, 13, 14, 14, 14]
PSTR = 272
PWAVE = 64 * PSTR

QSCALE = 0.25 * 1.4426950408889634
def f32(x):
    return "0x%08x" % struct.unpack('<I', struct.pack('<f', x))[0]

S_X, S_W0, S_WG, S_WU, S_WS, S_WO, S_WD, S_OUT = 16, 20, 24, 28, 32, 36, 40, 44
S_RB, S_CB, S_WAVE, S_RP, S_IX, S_B, S_K16, S_TAG, S_TAGC = 48, 49, 50, 51, 52, 53, 54, 55, 56
S_WDST, S_XDST, S_SRC0, S_SRC1, S_XSRC, S_SLAB, S_XU = 57, 58, 59, 60, 61, 62, 63
S_T0, S_T1, S_T2, S_T3 = 64, 65, 66, 67
S_CSDO, S_RPP, S_CT, S_W2B, S_ACTB, S_OUTO, S_W2D = 68, 69, 70, 71, 72, 73, 74
S_CW0, S_CW1, S_CX, S_CH = 75, 76, 77, 78
S_SEL = 79
S_M1, S_M2, S_M3 = 4, 6, 8
S_P0, S_P1, S_P2 = 10, 12, 14

PROF = False
SPIN_G = 200000
SPIN_L = 4000000

def stamp(a, k, real=False):
    if PROF:
        a(f"{'s_memrealtime' if real else 's_memtime'} s[{80+2*k}:{81+2*k}]")

def srd(a, d, ptr, nbytes):
    a(f"s_mov_b32 s{d}, s{ptr}\ns_mov_b32 s{d+1}, s{ptr+1}\ns_mov_b32 s{d+2}, 0x{nbytes:x}\ns_mov_b32 s{d+3}, 0x00020000")

class VQ:
    def __init__(self): self.q = []
    def push(self, tag): self.q.append(tag)
    def n_after(self, tags):
        idx = [k for k, q in enumerate(self.q) if q in tags]
        if not idx: return None
        return min(len(self.q) - 1 - max(idx), 63)
    def done(self, n):
        self.q = self.q[len(self.q) - n:] if n else []

def row_sum(a, v, t, lanes):
    for n in (8, 4, 2, 1):
        a(f"v_add_f32_dpp v{v}, v{v}, v{v} row_ror:{n} row_mask:0xf bank_mask:0xf")
    if lanes == 32:
        a(f"v_mov_b32 v{t}, v{v}")
        a(f"v_permlane16_swap_b32 v{v}, v{t}")
        a(f"v_add_f32 v{v}, v{v}, v{t}")

def row_stats(a, src, nd, un, res, lanes):
    for i in range(nd):
        a(f"v_lshlrev_b32 v{un+2*i}, 16, v{src+i}\nv_and_b32 v{un+2*i+1}, 0xffff0000, v{src+i}")
    a(f"v_pk_add_f32 v[{res+2}:{res+3}], v[{un}:{un+1}], v[{un+2}:{un+3}]")
    for i in range(2, nd):
        a(f"v_pk_add_f32 v[{res+2}:{res+3}], v[{res+2}:{res+3}], v[{un+2*i}:{un+2*i+1}]")
    a(f"v_add_f32 v{res}, v{res+2}, v{res+3}")
    row_sum(a, res, res + 2, lanes)
    a(f"v_mul_f32 v{res}, {f32(1/512)}, v{res}")
    for i in range(nd):
        a(f"v_pk_add_f32 v[{un+2*i}:{un+2*i+1}], v[{un+2*i}:{un+2*i+1}], v[{res}:{res+1}] op_sel_hi:[1,0] neg_lo:[0,1] neg_hi:[0,1]")
    a(f"v_pk_mul_f32 v[{res+2}:{res+3}], v[{un}:{un+1}], v[{un}:{un+1}]")
    for i in range(1, nd):
        a(f"v_pk_fma_f32 v[{res+2}:{res+3}], v[{un+2*i}:{un+2*i+1}], v[{un+2*i}:{un+2*i+1}], v[{res+2}:{res+3}]")
    a(f"v_add_f32 v{res+1}, v{res+2}, v{res+3}")
    row_sum(a, res + 1, res + 2, lanes)
    a(f"v_mov_b32 v{res+2}, {f32(1e-5)}")
    a(f"v_fmac_f32 v{res+2}, {f32(1/512)}, v{res+1}")
    a(f"v_rsq_f32 v{res+1}, v{res+2}")

def fold_a_frag(a, dst, c, tmp):
    return [f"v_cvt_pk_bf16_f32 v{dst}, v{c}, v{c}",
            f"v_and_b32 v{tmp}, 0xffff0000, v{dst}",
            f"v_sub_f32 v{tmp}, v{c}, v{tmp}",
            f"v_cvt_pk_bf16_f32 v{dst+1}, v{tmp}, v{tmp}",
            f"v_mov_b32 v{dst+2}, 0", f"v_mov_b32 v{dst+3}, 0"]

def fold_b_frag(a, dst, mean, tmp, tmp2):
    return [f"v_sub_f32 v{tmp2}, 0, v{mean}",
            f"v_cvt_pk_bf16_f32 v{tmp}, v{tmp2}, v{tmp2}",
            f"v_and_b32 v{tmp}, 0xffff0000, v{tmp}",
            f"v_sub_f32 v{tmp}, v{tmp2}, v{tmp}",
            f"v_cvt_pk_bf16_f32 v{dst}, v{tmp2}, v{tmp}",
            f"v_mov_b32 v{dst+1}, v{dst}",
            f"v_mov_b32 v{dst+2}, 0", f"v_mov_b32 v{dst+3}, 0"]

def interleave(a, mf, groups, skip_last=1):
    n = max(len(mf) - skip_last, 1)
    k = len(groups)
    idx = 0
    def emit(g):
        if callable(g): g()
        else:
            for s in g: a(s)
    for i, m in enumerate(mf):
        a(m)
        upto = min(k, (k * (i + 1) + n - 1) // n)
        while idx < upto:
            emit(groups[idx]); idx += 1
    while idx < k:
        emit(groups[idx]); idx += 1

def spin_lds(a, addr, name, vt):
    l0, l1 = a.newlabel(name + "_sp"), a.newlabel(name + "_ok")
    a(f"v_mov_b32 v{vt}, {addr}\ns_mov_b32 s{S_T1}, 0")
    a.label(l0)
    a(f"ds_read_b32 v{vt+1}, v{vt}\ns_waitcnt lgkmcnt(0)\nv_readfirstlane_b32 s{S_T0}, v{vt+1}")
    a(f"s_cmp_lg_u32 s{S_T0}, 0\ns_cbranch_scc1 {l1}")
    a(f"s_add_u32 s{S_T1}, s{S_T1}, 1\ns_cmp_gt_u32 s{S_T1}, {SPIN_L}\ns_cbranch_scc1 {l1}")
    a(f"s_sleep 1\ns_branch {l0}")
    a.label(l1)

def poll_flags(a, nfl, rdy, name, vt):
    l0, l1 = a.newlabel(name + "_pl"), a.newlabel(name + "_pok")
    a(f"v_lshlrev_b32 v{vt}, 2, v1")
    a(f"s_lshl_b32 s{S_T2}, s{S_RB}, 7\ns_add_u32 s{S_T2}, s{S_T2}, 0x{FLAG_OFF:x}\ns_mov_b32 s{S_T1}, 0")
    a(f"s_mov_b64 exec, 0x{(1 << nfl) - 1:x}")
    a.label(l0)
    a(f"buffer_load_dword v{vt+1}, v{vt}, s[{S_WS}:{S_WS+3}], s{S_T2} offen sc1")
    a("s_waitcnt vmcnt(0)")
    a(f"v_cmp_ne_u32 vcc, s{S_TAG}, v{vt+1}")
    a(f"s_cmp_eq_u64 vcc, 0\ns_cbranch_scc1 {l1}")
    a(f"s_add_u32 s{S_T1}, s{S_T1}, 1\ns_cmp_gt_u32 s{S_T1}, {SPIN_G}\ns_cbranch_scc0 {l0}")
    a.label(l1)
    a("s_mov_b64 exec, -1")
    a(f"v_mov_b32 v{vt}, {rdy}\nv_mov_b32 v{vt+1}, 1\nds_write_b32 v{vt}, v{vt+1}")

def gen_role(a, typ, role):
    P = f"R{typ}{role}"
    att = typ == 'att'
    isA = role == 'A'
    halo = att and not isA
    NT = 3 if isA else 2
    ACC = 64
    def acc(c, t): return ACC + (c * 2 + t) * 16
    HACC = 128
    FB = 160
    FSZ = 40 if isA else 44
    def fX(p, cs, t): return FB + p * FSZ + (cs * 2 + t) * 4
    def fW(p, cs, c): return FB + p * FSZ + 16 + (cs * NT + c) * 4
    def fH(p): return FB + p * FSZ + 32
    VW = [[2, 3], [4, 5]]
    VWH = [6, 7]
    VX = [8, 9, 10, 11]
    VXH = [12, 13]
    VDW = 14
    VD = [16, 17, 18, 19, 20]
    VDX = [21, 22]
    VDH = 23
    REC = 24
    VSTR = 56
    HREC = 136
    VST = 28
    VCS = 24
    VCSH = 32
    VSTH = 34
    T = 40
    vq = VQ()
    a.label(P)
    stamp(a, 0); stamp(a, 1, True)

    if not isA:
        a(f"v_lshrrev_b32 v{T}, 3, v1\nv_and_b32 v{T+1}, 7, v1\nv_lshrrev_b32 v{T+2}, 4, v1")
        if att:
            a(f"v_and_b32 v{T+3}, 1, v{T+2}\nv_lshlrev_b32 v{T+3}, 2, v{T+3}\nv_xor_b32 v{T+3}, v{T+3}, v{T+1}")
            a(f"v_lshlrev_b32 v{T+4}, 4, v{T+3}")
            a(f"v_mul_u32_u24 v{T+5}, 3072, v{T}\nv_add_u32 v{VD[0]}, v{T+5}, v{T+4}")
            a(f"v_mul_u32_u24 v{T+5}, 3584, v{T}\nv_add_u32 v{VD[1]}, v{T+5}, v{T+4}")
            a(f"v_xor_b32 v{T+4}, 32, v{T+4}\nv_add_u32 v{VD[2]}, v{T+5}, v{T+4}")
            a(f"s_mul_i32 s{S_SRC0}, s{S_B}, {8*3072}\ns_lshl_b32 s{S_T0}, s{S_CB}, 7\ns_add_u32 s{S_SRC0}, s{S_SRC0}, s{S_T0}")
            a(f"s_mul_i32 s{S_SRC1}, s{S_B}, {8*3584}\ns_add_u32 s{S_SRC1}, s{S_SRC1}, s{S_T0}")
            a(f"s_lshl_b32 s{S_WDST}, s{S_B}, 10")
        else:
            for m in range(5):
                a(f"v_add_u32 v{T+3}, {64*m}, v1")
                a(f"v_mul_u32_u24 v{T+4}, 3277, v{T+3}\nv_lshrrev_b32 v{T+4}, 16, v{T+4}")
                a(f"v_mul_u32_u24 v{T+5}, 20, v{T+4}\nv_sub_u32 v{T+5}, v{T+3}, v{T+5}")
                a(f"v_mul_u32_u24 v{T+4}, 3584, v{T+4}\nv_lshlrev_b32 v{T+5}, 4, v{T+5}\nv_add_u32 v{VD[m]}, v{T+4}, v{T+5}")
            a(f"s_and_b32 s{S_T1}, s{S_B}, 1")
            a(f"s_mul_i32 s{S_SRC0}, s{S_T1}, {16*3584}\ns_mul_i32 s{S_T0}, s{S_CB}, 320\ns_add_u32 s{S_SRC0}, s{S_SRC0}, s{S_T0}\ns_add_u32 s{S_SRC0}, s{S_SRC0}, 1024")
            a(f"s_mul_i32 s{S_WDST}, s{S_T1}, 5120\ns_lshr_b32 s{S_T0}, s{S_B}, 1\ns_mul_i32 s{S_T0}, s{S_T0}, {FFN_UOFF}\ns_add_u32 s{S_WDST}, s{S_WDST}, s{S_T0}")
        a(f"v_xor_b32 v{T+3}, v{T+1}, v{T+2}\nv_lshlrev_b32 v{T+3}, 4, v{T+3}\nv_lshlrev_b32 v{T+4}, 11, v{T}")
        a(f"v_add_u32 v{VDX[0]}, v{T+4}, v{T+3}\nv_xor_b32 v{VDX[1]}, 64, v{VDX[0]}")
        a(f"s_lshl_b32 s{S_XSRC}, s{S_RB}, 17\ns_lshr_b32 s{S_T0}, s{S_B}, 1\ns_lshl_b32 s{S_T0}, s{S_T0}, 16\ns_add_u32 s{S_XSRC}, s{S_XSRC}, s{S_T0}")
        a(f"s_and_b32 s{S_T0}, s{S_B}, 1\ns_lshl_b32 s{S_T0}, s{S_T0}, 10\ns_add_u32 s{S_XSRC}, s{S_XSRC}, s{S_T0}")
        a(f"s_lshl_b32 s{S_XDST}, s{S_B}, 12\ns_add_u32 s{S_XDST}, s{S_XDST}, {XRING}")
        if halo:
            a(f"s_lshl_b32 s{S_T0}, s{S_B}, 2")
            a(f"v_add_u32 v{T+3}, s{S_T0}, v{T}")
            a(f"v_and_b32 v{T+3}, 15, v{T+3}")
            a(f"v_and_b32 v{T+4}, 7, v{T+3}\nv_lshlrev_b32 v{T+4}, 1, v{T+4}\nv_lshrrev_b32 v{T+5}, 3, v{T+3}\nv_add_u32 v{T+4}, v{T+4}, v{T+5}")
            a(f"s_lshl_b32 s{S_T0}, s{S_RB}, 7\ns_sub_u32 s{S_T0}, s{S_T0}, 16\ns_max_i32 s{S_T0}, s{S_T0}, 0")
            a(f"v_add_u32 v{T+4}, s{S_T0}, v{T+4}\nv_lshlrev_b32 v{T+4}, 10, v{T+4}")
            a(f"v_bfe_u32 v{T+5}, v{T+3}, 1, 3\nv_xor_b32 v{T+5}, v{T+5}, v{T+1}\nv_lshlrev_b32 v{T+5}, 4, v{T+5}")
            a(f"v_add_u32 v{VDH}, v{T+4}, v{T+5}")
        a(f"s_lshr_b32 s{S_XU}, s{S_RB}, 1\ns_lshl_b32 s{S_SLAB}, s{S_XU}, 1")
    else:
        a(f"v_lshrrev_b32 v{T}, 5, v1\nv_lshlrev_b32 v{T}, 10, v{T}\nv_and_b32 v{T+1}, 31, v1\nv_lshlrev_b32 v{T+1}, 4, v{T+1}\nv_add_u32 v{T}, v{T}, v{T+1}")
        a(f"s_lshl_b32 s{S_T2}, s{S_RB}, 7\ns_lshl_b32 s{S_T0}, s{S_K16}, 3\ns_add_u32 s{S_T2}, s{S_T2}, s{S_T0}\ns_lshl_b32 s{S_T0}, s{S_B}, 1\ns_add_u32 s{S_T2}, s{S_T2}, s{S_T0}")
        a(f"s_lshl_b32 s{S_T3}, s{S_T2}, 10")
        if att:
            a(f"v_lshrrev_b32 v{T+2}, 4, v1\ns_lshl_b32 s{S_T0}, s{S_B}, 2\nv_add_u32 v{T+2}, s{S_T0}, v{T+2}")
            a(f"v_and_b32 v{T+3}, 7, v{T+2}\nv_lshlrev_b32 v{T+3}, 1, v{T+3}\nv_lshrrev_b32 v{T+4}, 3, v{T+2}\nv_add_u32 v{T+3}, v{T+3}, v{T+4}")
            a(f"s_lshl_b32 s{S_T0}, s{S_RB}, 7\ns_sub_u32 s{S_T0}, s{S_T0}, 16\ns_max_i32 s{S_T0}, s{S_T0}, 0")
            a(f"v_add_u32 v{T+3}, s{S_T0}, v{T+3}\nv_lshlrev_b32 v{T+3}, 10, v{T+3}")
            a(f"v_and_b32 v{T+4}, 15, v1\nv_lshlrev_b32 v{T+4}, 4, v{T+4}\nv_add_u32 v{T+3}, v{T+3}, v{T+4}")

    a("s_waitcnt lgkmcnt(0)")
    srd(a, S_X, 4, 2048 * 1024)
    srd(a, S_WS, 12, WS_SIZE)
    if not isA:
        if att:
            srd(a, S_W0, 6, 512 * 3072)
            srd(a, S_WG, 8, 512 * 3584)
            srd(a, S_WU, 10, 512 * 3584)
        else:
            a(f"s_cmp_lt_u32 s{S_B}, 2")
            a(f"s_cselect_b32 s{S_W0}, s8, s10\ns_cselect_b32 s{S_W0+1}, s9, s11")
            a(f"s_mov_b32 s{S_W0+2}, 0x{512*3584:x}\ns_mov_b32 s{S_W0+3}, 0x00020000")

    def dma_w(s):
        L = []
        dst = (s % 5) * WSLOT
        if att:
            L.append([f"s_mul_i32 s{S_CW0}, s{S_SLAB}, {32*3072}", f"s_mul_i32 s{S_CW1}, s{S_SLAB}, {32*3584}",
                      f"s_add_u32 s{S_CW0}, s{S_CW0}, s{S_SRC0}", f"s_add_u32 s{S_CW1}, s{S_CW1}, s{S_SRC1}",
                      f"s_add_u32 s{S_SLAB}, s{S_SLAB}, 1", f"s_and_b32 s{S_SLAB}, s{S_SLAB}, 15"])
            for p in range(5):
                srdn = S_W0 if p < 3 else (S_WG if p == 3 else S_WU)
                src = S_CW0 if p < 3 else S_CW1
                vo = VD[0] if p < 3 else VD[p - 2]
                g = [f"s_add_u32 m0, s{S_WDST}, {dst + p*4096}"]
                if p in (1, 2):
                    g.append(f"s_add_u32 s{S_T0}, s{src}, {p*1024}"); so = S_T0
                else:
                    so = src
                g.append(f"buffer_load_dwordx4 v{vo}, s[{srdn}:{srdn+3}], s{so} offen lds")
                g.append(lambda s=s: vq.push(('W', s)))
                L.append(g)
        else:
            L.append([f"s_mul_i32 s{S_CW0}, s{S_SLAB}, {32*3584}", f"s_add_u32 s{S_CW0}, s{S_CW0}, s{S_SRC0}",
                      f"s_add_u32 s{S_SLAB}, s{S_SLAB}, 1", f"s_and_b32 s{S_SLAB}, s{S_SLAB}, 15"])
            for m in range(5):
                L.append([f"s_add_u32 m0, s{S_WDST}, {dst + m*1024}",
                          f"buffer_load_dwordx4 v{VD[m]}, s[{S_W0}:{S_W0+3}], s{S_CW0} offen lds",
                          lambda s=s: vq.push(('W', s))])
        return L

    def dma_x(u):
        L = []
        dst = (u % 3) * XSLOT
        L.append([f"s_lshl_b32 s{S_CH}, s{S_XU}, 7", f"s_add_u32 s{S_CX}, s{S_CH}, s{S_XSRC}",
                  f"s_add_u32 s{S_XU}, s{S_XU}, 1", f"s_and_b32 s{S_XU}, s{S_XU}, 7"])
        for i in range(4):
            g = [f"s_add_u32 m0, s{S_XDST}, {dst + i*1024}"]
            if i:
                g.append(f"s_add_u32 s{S_T0}, s{S_CX}, {i*16384}"); so = S_T0
            else:
                so = S_CX
            g.append(f"buffer_load_dwordx4 v{VDX[i&1]}, s[{S_X}:{S_X+3}], s{so} offen lds")
            g.append(lambda u=u: vq.push(('X', u)))
            L.append(g)
        if halo:
            L.append([f"s_lshl_b32 s{S_T0}, s{S_B}, 9", f"s_add_u32 m0, s{S_T0}, {XRING + dst + 16384}",
                      "s_mov_b32 exec_hi, 0",
                      f"buffer_load_dwordx4 v{VDH}, s[{S_X}:{S_X+3}], s{S_CH} offen lds",
                      "s_mov_b32 exec_hi, -1", lambda u=u: vq.push(('X', u))])
        return L

    def emit_groups(L):
        for g in L:
            for s in g:
                if callable(s): s()
                else: a(s)

    def wrap(L):
        return [(lambda g=g: emit_groups([g])) for g in L]

    a(f"s_lshl_b32 s{S_T0}, s{S_RB}, 7\ns_add_u32 s{S_T0}, s{S_T0}, 0x{EP_OFF:x}\ns_lshl_b32 s{S_T1}, s{S_K16}, 7\ns_add_u32 s{S_T1}, s{S_T1}, 0x{EPC_OFF:x}")
    if not isA:
        emit_groups(dma_w(0)); emit_groups(dma_x(0))
        a(f"s_lshl_b32 s{S_T0}, s{S_RB}, 7\ns_add_u32 s{S_T0}, s{S_T0}, 0x{EP_OFF:x}\ns_lshl_b32 s{S_T1}, s{S_K16}, 7\ns_add_u32 s{S_T1}, s{S_T1}, 0x{EPC_OFF:x}")
    a(f"buffer_load_dword v62, off, s[{S_WS}:{S_WS+3}], s{S_T0} sc1"); vq.push('EP')
    a(f"buffer_load_dword v63, off, s[{S_WS}:{S_WS+3}], s{S_T1} sc1"); vq.push('EP')
    if not isA:
        emit_groups(dma_w(1)); emit_groups(dma_w(2)); emit_groups(dma_x(1))
        emit_groups(dma_w(3)); emit_groups(dma_w(4)); emit_groups(dma_x(2))
    else:
        SS = 160
        a(f"buffer_load_dwordx4 v[{SS}:{SS+3}], v{T}, s[{S_X}:{S_X+3}], s{S_T3} offen")
        a(f"buffer_load_dwordx4 v[{SS+4}:{SS+7}], v{T}, s[{S_X}:{S_X+3}], s{S_T3} offen offset:512")
        vq.push('ST'); vq.push('ST')
        if att:
            for i in range(4):
                a(f"buffer_load_dwordx4 v[{SS+8+4*i}:{SS+8+4*i+3}], v{T+3}, s[{S_X}:{S_X+3}], 0 offen offset:{256*i}")
                vq.push('SH')
        a(f"s_lshl_b32 s{S_CX}, s{S_T2}, 4\ns_add_u32 s{S_CX}, s{S_CX}, 0x{STATS_OFF:x}")

    srd(a, S_WO, 14, 512 * 1024)
    a(f"s_mov_b32 s{S_WD}, s{S_WD+4}\ns_mov_b32 s{S_WD+1}, s{S_WD+5}\ns_mov_b32 s{S_WD+2}, 0x{1792*1024:x}\ns_mov_b32 s{S_WD+3}, 0x00020000")
    a(f"s_mov_b32 s{S_OUT}, s{S_OUT+2}\ns_mov_b32 s{S_OUT+1}, s{S_OUT+3}\ns_mov_b32 s{S_OUT+2}, 0x{2048*1024:x}\ns_mov_b32 s{S_OUT+3}, 0x00020000")

    a(f"v_lshrrev_b32 v{T+6}, 4, v1")
    g_, r_, c4_, gh_, gl_, kr_, sw_ = T + 6, T + 7, T + 8, T + 9, T + 10, T + 11, T + 12
    a(f"v_bfe_u32 v{r_}, v1, 2, 2\nv_and_b32 v{c4_}, 3, v1\nv_lshrrev_b32 v{gh_}, 1, v{g_}\nv_and_b32 v{gl_}, 1, v{g_}")
    a(f"v_lshlrev_b32 v{kr_}, 3, v{gh_}\nv_add_u32 v{kr_}, v{kr_}, v{r_}\nv_lshrrev_b32 v{sw_}, 1, v{r_}")
    U = T + 13
    if att:
        a(f"v_xor_b32 v{U}, s{S_IX}, v{sw_}\nv_lshlrev_b32 v{U}, 6, v{U}")
        a(f"v_lshlrev_b32 v{U+1}, 7, v{kr_}\nv_add_u32 v{U+1}, v{U+1}, v{U}")
        a(f"v_lshlrev_b32 v{U+2}, 3, v{c4_}\nv_add_u32 v{U+1}, v{U+1}, v{U+2}")
        if isA:
            a(f"v_lshlrev_b32 v{U+2}, 5, v{gl_}\nv_add_u32 v{VW[0][0]}, v{U+1}, v{U+2}")
        else:
            a(f"v_mul_u32_u24 v{U+2}, {4096+32}, v{gl_}")
            a(f"v_add_u32 v{VW[0][0]}, v{U+1}, v{U+2}\nv_add_u32 v{VW[0][0]}, {3*4096}, v{VW[0][0]}")
            a(f"v_xor_b32 v{VW[1][0]}, 32, v{VW[0][0]}")
            a(f"v_add_u32 v{VW[1][1]}, {3*WSLOT}, v{VW[1][0]}")
            a(f"v_lshlrev_b32 v{U+2}, 3, v{g_}\nv_add_u32 v{U+2}, v{U+2}, v{r_}\nv_lshlrev_b32 v{U+2}, 7, v{U+2}")
            a(f"s_lshr_b32 s{S_T0}, s{S_B}, 1\ns_and_b32 s{S_T1}, s{S_B}, 1\ns_lshl_b32 s{S_T1}, s{S_T1}, 5\ns_add_u32 s{S_T1}, s{S_T1}, 4096")
            a(f"v_xor_b32 v{U+3}, s{S_T0}, v{sw_}\nv_lshlrev_b32 v{U+3}, 6, v{U+3}")
            a(f"v_add_u32 v{U+2}, v{U+2}, v{U+3}\nv_lshlrev_b32 v{U+3}, 3, v{c4_}\nv_add_u32 v{U+2}, v{U+2}, v{U+3}")
            a(f"v_add_u32 v{VWH[0]}, s{S_T1}, v{U+2}\nv_add_u32 v{VWH[1]}, {3*WSLOT}, v{VWH[0]}")
    else:
        a(f"v_mul_u32_u24 v{U}, {FFN_UOFF}, v{gl_}\nv_mul_u32_u24 v{U+1}, 320, v{kr_}\nv_add_u32 v{U}, v{U}, v{U+1}")
        a(f"v_lshlrev_b32 v{U+2}, 3, v{c4_}\nv_add_u32 v{U}, v{U}, v{U+2}")
        if isA:
            a(f"s_mul_i32 s{S_T0}, s{S_IX}, 96")
        else:
            a(f"s_lshl_b32 s{S_T0}, s{S_IX}, 6\ns_add_u32 s{S_T0}, s{S_T0}, 192")
        a(f"v_add_u32 v{VW[0][0]}, s{S_T0}, v{U}")
    a(f"v_add_u32 v{VW[0][1]}, {3*WSLOT}, v{VW[0][0]}")
    a(f"v_and_b32 v{U}, 31, v1\nv_lshrrev_b32 v{U+1}, 5, v1\nv_bfe_u32 v{U+2}, v1, 1, 3")
    a(f"v_xor_b32 v{U+2}, v{U+2}, v{U+1}\nv_lshlrev_b32 v{U+2}, 4, v{U+2}")
    a(f"v_lshlrev_b32 v{U}, 7, v{U}\nv_add_u32 v{U}, v{U}, v{U+2}")
    a(f"s_lshl_b32 s{S_T0}, s{S_RP}, 13\ns_add_u32 s{S_T0}, s{S_T0}, {XRING}")
    a(f"v_add_u32 v{VX[0]}, s{S_T0}, v{U}")
    for cu in range(1, 4):
        a(f"v_xor_b32 v{VX[cu]}, {cu*32}, v{VX[0]}")
    if halo:
        a(f"v_and_b32 v{U}, 15, v1\nv_lshrrev_b32 v{U+1}, 4, v1\nv_bfe_u32 v{U+2}, v1, 1, 3")
        a(f"v_xor_b32 v{U+2}, v{U+2}, v{U+1}\nv_lshlrev_b32 v{U+2}, 4, v{U+2}")
        a(f"v_lshlrev_b32 v{U}, 7, v{U}\nv_add_u32 v{U}, v{U}, v{U+2}")
        a(f"v_add_u32 v{VXH[0]}, {XRING + 16384}, v{U}\nv_xor_b32 v{VXH[1]}, 64, v{VXH[0]}")
    a(f"v_lshrrev_b32 v{U}, 3, v1\nv_and_b32 v{U+1}, 3, v{U}\nv_lshrrev_b32 v{U+2}, 2, v{U}\nv_lshlrev_b32 v{U+2}, 3, v{U+2}\nv_add_u32 v{U+1}, v{U+1}, v{U+2}")
    a(f"v_lshlrev_b32 v{U+1}, 10, v{U+1}")
    a(f"v_bfe_u32 v{U+2}, v{U}, 1, 1\nv_lshlrev_b32 v{U+2}, 2, v{U+2}\nv_and_b32 v{U+3}, 7, v1\nv_xor_b32 v{U+2}, v{U+2}, v{U+3}\nv_lshlrev_b32 v{U+2}, 4, v{U+2}")
    a(f"v_add_u32 v{VDW}, v{U+1}, v{U+2}")
    a(f"s_and_b32 s{S_T0}, s2, 7\ns_lshr_b32 s{S_T0}, s{S_T0}, 1\ns_and_b32 s{S_T1}, s{S_T0}, 1\ns_lshl_b32 s{S_RPP}, s{S_RB}, 1\ns_add_u32 s{S_RPP}, s{S_RPP}, s{S_T1}")
    a(f"s_lshr_b32 s{S_T0}, s{S_T0}, 1\ns_lshl_b32 s{S_T0}, s{S_T0}, 2\ns_add_u32 s{S_CT}, s{S_T0}, s{S_SEL}")
    a(f"s_lshl_b32 s{S_W2B}, s{S_B}, 14\ns_lshl_b32 s{S_T0}, s{S_CT}, 7\ns_add_u32 s{S_W2B}, s{S_W2B}, s{S_T0}")
    if not isA: a(f"s_add_u32 s{S_W2B}, s{S_W2B}, {40*16384}")
    a(f"s_lshl_b32 s{S_W2D}, s{S_WAVE}, 11")
    a(f"s_mul_i32 s{S_ACTB}, s{S_RPP}, {2*ACT_T}\ns_lshl_b32 s{S_T0}, s{S_B}, 10\ns_add_u32 s{S_ACTB}, s{S_ACTB}, s{S_T0}")
    a(f"s_and_b32 s{S_CSDO}, s{S_RB}, 1\ns_cmp_eq_u32 s{S_RP}, 0\ns_cselect_b32 s{S_CSDO}, s{S_CSDO}, 2")

    def w2_dma(i, blk):
        if isA and i >= 10: srdn, ii = S_WO, i - 10
        else: srdn, ii = S_WD, i
        L = []
        for n in range(2):
            L.append([f"s_add_u32 m0, s{S_W2D}, {BLK[blk] + n*1024}",
                      f"s_add_u32 s{S_T0}, s{S_W2B}, {ii*65536 + n*4096}",
                      f"buffer_load_dwordx4 v{VDW}, s[{srdn}:{srdn+3}], s{S_T0} offen lds",
                      lambda i=i: vq.push(('D', i))])
        return L

    if isA:
        l_no = a.newlabel(P + "_noinit")
        a(f"s_cmp_lg_u32 s{S_WAVE}, 0\ns_cbranch_scc1 {l_no}")
        a(f"v_mov_b32 v{U}, {MISC}")
        a(f"v_mov_b32 v{REC}, 0\nv_mov_b32 v{REC+1}, 0\nv_mov_b32 v{REC+2}, 0\nv_mov_b32 v{REC+3}, 0")
        a(f"ds_write_b128 v{U}, v[{REC}:{REC+3}]")
        a.label(l_no)
        n = vq.n_after(['EP', 'ST'])
        a(f"s_waitcnt vmcnt({n})"); vq.done(n)
        a(f"v_readfirstlane_b32 s{S_TAG}, v62\nv_readfirstlane_b32 s{S_TAGC}, v63")
        a(f"s_mul_i32 s{S_TAG}, s{S_TAG}, 0x{LCG_A:x}\ns_add_u32 s{S_TAG}, s{S_TAG}, 0x{LCG_C:x}")
        a(f"s_mul_i32 s{S_TAGC}, s{S_TAGC}, 0x{LCG_A:x}\ns_add_u32 s{S_TAGC}, s{S_TAGC}, 0x{LCG_C:x}")
        RES = 200
        row_stats(a, 160, 8, 208, RES, 32)
        a(f"v_mov_b32 v{RES+2}, s{S_TAG}\nv_mov_b32 v{RES+3}, s{S_TAG}")
        a(f"v_lshrrev_b32 v{U}, 5, v1\nv_lshlrev_b32 v{U}, 4, v{U}")
        a("s_mov_b32 exec_lo, 1\ns_mov_b32 exec_hi, 1")
        a(f"buffer_store_dwordx4 v[{RES}:{RES+3}], v{U}, s[{S_WS}:{S_WS+3}], s{S_CX} offen sc1"); vq.push('SS')
        a("s_mov_b64 exec, -1")
        if att:
            n = vq.n_after(['SH'])
            a(f"s_waitcnt vmcnt({n})"); vq.done(n)
            RES2 = 204
            row_stats(a, 168, 16, 208, RES2, 16)
            a(f"v_lshrrev_b32 v{U}, 4, v1\nv_lshlrev_b32 v{U}, 3, v{U}\ns_lshl_b32 s{S_T0}, s{S_B}, 5\ns_add_u32 s{S_T0}, s{S_T0}, {HST}\nv_add_u32 v{U}, s{S_T0}, v{U}")
            a("s_mov_b32 exec_lo, 0x00010001\ns_mov_b32 exec_hi, 0x00010001")
            a(f"ds_write_b64 v{U}, v[{RES2}:{RES2+1}]")
            a("s_mov_b64 exec, -1")
    stamp(a, 2)
    if not isA:
        n = vq.n_after([('W', 0), ('X', 0), 'EP'])
        a(f"s_waitcnt vmcnt({n})"); vq.done(n)
        a(f"v_readfirstlane_b32 s{S_TAG}, v62\nv_readfirstlane_b32 s{S_TAGC}, v63")
        a(f"s_mul_i32 s{S_TAG}, s{S_TAG}, 0x{LCG_A:x}\ns_add_u32 s{S_TAG}, s{S_TAG}, 0x{LCG_C:x}")
        a(f"s_mul_i32 s{S_TAGC}, s{S_TAGC}, 0x{LCG_A:x}\ns_add_u32 s{S_TAGC}, s{S_TAGC}, 0x{LCG_C:x}")
    a("s_waitcnt lgkmcnt(0)\ns_barrier")
    stamp(a, 3)

    def reads(s):
        p = s & 1
        slot = s % 5
        hi = 1 if slot >= 3 else 0
        wo = (slot - 3 * hi) * WSLOT
        xo = ((s >> 1) % 3) * XSLOT
        L = []
        for cs in range(2):
            cu = 2 * (s & 1) + cs
            for t in range(2):
                L.append(f"ds_read_b128 v[{fX(p,cs,t)}:{fX(p,cs,t)+3}], v{VX[cu]} offset:{xo + t*4096}")
            for c in range(NT):
                for h in range(2):
                    if att and isA: va, off = VW[0][hi], c * 4096 + cs * 2048 + h * 512
                    elif att: va, off = VW[c][hi], cs * 2048 + h * 512
                    else: va, off = VW[0][hi], c * 32 + cs * 5120 + h * 1280
                    L.append(f"ds_read_b64_tr_b16 v[{fW(p,cs,c)+2*h}:{fW(p,cs,c)+2*h+1}], v{va} offset:{wo + off}")
        if halo:
            for m in range(2):
                for h in range(2):
                    L.append(f"ds_read_b64_tr_b16 v[{fH(p)+4*m+2*h}:{fH(p)+4*m+2*h+1}], v{VWH[hi]} offset:{wo + m*4096 + h*512}")
            L.append(f"ds_read_b128 v[{fH(p)+8}:{fH(p)+11}], v{VXH[s&1]} offset:{xo}")
        return L

    def mfmas(p, cs, first=False):
        L = []
        for c in range(NT):
            for t in range(2):
                cin = "0" if first else f"v[{acc(c,t)}:{acc(c,t)+15}]"
                L.append(f"v_mfma_f32_32x32x16_bf16 v[{acc(c,t)}:{acc(c,t)+15}], v[{fW(p,cs,c)}:{fW(p,cs,c)+3}], v[{fX(p,cs,t)}:{fX(p,cs,t)+3}], {cin}")
        return L

    def halo_mfmas(p, first=False):
        L = []
        for m in range(2):
            cin = "0" if first else f"v[{HACC+4*m}:{HACC+4*m+3}]"
            L.append(f"v_mfma_f32_16x16x32_bf16 v[{HACC+4*m}:{HACC+4*m+3}], v[{fH(p)+4*m}:{fH(p)+4*m+3}], v[{fH(p)+8}:{fH(p)+11}], {cin}")
        return L

    ROLEIX = (0 if isA else 2)
    def colsum_block(s):
        lab = a.newlabel(P + "_nocs")
        p = s & 1
        a(f"s_cmp_lg_u32 s{S_CSDO}, {s}\ns_cbranch_scc1 {lab}")
        SELV, D = 40, 44
        a(f"v_bfe_u32 v{SELV}, v1, 4, 1\nv_and_b32 v{SELV+1}, 1, v1\nv_cmp_eq_u32 vcc, v{SELV}, v{SELV+1}")
        a(f"v_mov_b32 v{SELV+2}, 0x3f803f80\nv_cndmask_b32 v{SELV}, 0, v{SELV+2}, vcc")
        a(f"v_mov_b32 v{SELV+1}, v{SELV}\nv_mov_b32 v{SELV+2}, v{SELV}\nv_mov_b32 v{SELV+3}, v{SELV}")
        for cs in range(2):
            for c in range(NT):
                cin = "0" if cs == 0 else f"v[{D+4*c}:{D+4*c+3}]"
                a(f"v_mfma_f32_16x16x32_bf16 v[{D+4*c}:{D+4*c+3}], v[{SELV}:{SELV+3}], v[{fW(p,cs,c)}:{fW(p,cs,c)+3}], {cin}")
        a(f"v_bfe_u32 v{REC+4}, v1, 4, 1\nv_cmp_eq_u32 vcc, 1, v{REC+4}")
        for c in range(NT):
            a(f"v_cndmask_b32 v{REC+c}, v{D+4*c}, v{D+4*c+1}, vcc")
        for c in range(NT, 4):
            a(f"v_mov_b32 v{REC+c}, s{S_TAGC}")
        a(f"s_lshl_b32 s{S_T0}, s{S_K16}, 2\ns_add_u32 s{S_T0}, s{S_T0}, s{S_IX}\ns_add_u32 s{S_T0}, s{S_T0}, {ROLEIX}\ns_lshl_b32 s{S_T0}, s{S_T0}, 4\ns_add_u32 s{S_T0}, s{S_T0}, s{S_RB}")
        a(f"s_lshl_b32 s{S_T0}, s{S_T0}, 9\ns_add_u32 s{S_T0}, s{S_T0}, 0x{CSP_OFF:x}")
        a(f"v_lshlrev_b32 v{REC+4}, 4, v1")
        a("s_mov_b32 exec_hi, 0")
        a(f"buffer_store_dwordx4 v[{REC}:{REC+3}], v{REC+4}, s[{S_WS}:{S_WS+3}], s{S_T0} offen sc1")
        a("s_mov_b32 exec_hi, -1")
        a.label(lab)

    def rec_loads():
        L = []
        L.append([f"v_and_b32 v15, 31, v1", f"v_lshlrev_b32 v15, 4, v15", f"v_lshrrev_b32 v{VSTR}, 5, v1", f"v_lshlrev_b32 v{VSTR}, 12, v{VSTR}",
                  f"v_add_u32 v15, v15, v{VSTR}",
                  f"s_lshl_b32 s12, s{S_K16}, 2", f"s_add_u32 s12, s12, s{S_IX}", f"s_add_u32 s12, s12, {ROLEIX}",
                  f"s_lshl_b32 s12, s12, 13", f"s_add_u32 s12, s12, 0x{CSP_OFF:x}"])
        for i in range(8):
            L.append([f"buffer_load_dwordx4 v[{REC+4*i}:{REC+4*i+3}], v15, s[{S_WS}:{S_WS+3}], s12 offen offset:{i*512} sc1",
                      lambda: vq.push('R')])
        if halo:
            L.append([f"v_and_b32 v15, 15, v1", f"v_lshlrev_b32 v15, 4, v15", f"v_lshrrev_b32 v{VSTR}, 4, v1", f"v_lshlrev_b32 v{VSTR}, 11, v{VSTR}",
                      f"v_add_u32 v15, v15, v{VSTR}",
                      f"s_lshl_b32 s13, s{S_K16}, 2", f"s_lshr_b32 s{S_T0}, s{S_B}, 1", f"s_add_u32 s13, s13, s{S_T0}",
                      f"s_lshl_b32 s13, s13, 13", f"s_and_b32 s{S_T0}, s{S_B}, 1", f"s_lshl_b32 s{S_T0}, s{S_T0}, 8",
                      f"s_add_u32 s13, s13, s{S_T0}", f"s_add_u32 s13, s13, 0x{CSP_OFF:x}"])
            for i in range(4):
                L.append([f"buffer_load_dwordx4 v[{HREC+4*i}:{HREC+4*i+3}], v15, s[{S_WS}:{S_WS+3}], s13 offen offset:{i*512} sc1",
                          lambda: vq.push('R')])
        L.append([f"v_and_b32 v15, 31, v1", f"v_lshlrev_b32 v15, 5, v15",
                  f"s_lshl_b32 s14, s{S_RB}, 11", f"s_lshl_b32 s{S_T0}, s{S_RP}, 10",
                  f"s_add_u32 s14, s14, s{S_T0}",
                  f"s_add_u32 s14, s14, 0x{STATS_OFF:x}"])
        for t in range(2):
            L.append([f"buffer_load_dwordx4 v[{VSTR+4*t}:{VSTR+4*t+3}], v15, s[{S_WS}:{S_WS+3}], s14 offen offset:{16*t} sc1",
                      lambda: vq.push('R')])
        return L

    def rec_check(ok_label, retry_label):
        a(f"v_cmp_ne_u32 s[{S_P0}:{S_P0+1}], s{S_TAGC}, v{REC+3}")
        for i in range(1, 8):
            a(f"v_cmp_ne_u32 vcc, s{S_TAGC}, v{REC+4*i+3}\ns_or_b64 s[{S_P0}:{S_P0+1}], s[{S_P0}:{S_P0+1}], vcc")
        if halo:
            for i in range(4):
                a(f"v_cmp_ne_u32 vcc, s{S_TAGC}, v{HREC+4*i+3}\ns_or_b64 s[{S_P0}:{S_P0+1}], s[{S_P0}:{S_P0+1}], vcc")
        for t in range(2):
            a(f"v_cmp_ne_u32 vcc, s{S_TAG}, v{VSTR+4*t+3}\ns_or_b64 s[{S_P0}:{S_P0+1}], s[{S_P0}:{S_P0+1}], vcc")
        a(f"s_cmp_lg_u64 s[{S_P0}:{S_P0+1}], 0\ns_cbranch_scc1 {retry_label}")
        a.label(ok_label)

    L_OK, L_RETRY = P + "_recok", P + "_retry"

    def rec_sum():
        L = []
        for i in range(1, 8):
            L.append([f"v_pk_add_f32 v[{REC}:{REC+1}], v[{REC}:{REC+1}], v[{REC+4*i}:{REC+4*i+1}]"] +
                     ([f"v_add_f32 v{REC+2}, v{REC+2}, v{REC+4*i+2}"] if NT == 3 else []))
        L.append([f"v_mov_b32 v{VST}, v{VSTR}", f"v_mov_b32 v{VST+1}, v{VSTR+1}", f"v_mov_b32 v{VST+2}, v{VSTR+4}", f"v_mov_b32 v{VST+3}, v{VSTR+5}"])
        if halo:
            L.append([f"v_add_f32 v{VCSH}, v{HREC+1}, v{HREC+5}", f"v_add_f32 v{VCSH+1}, v{HREC+2}, v{HREC+6}",
                      f"v_add_f32 v{HREC+1}, v{HREC+9}, v{HREC+13}", f"v_add_f32 v{HREC+2}, v{HREC+10}, v{HREC+14}",
                      f"v_add_f32 v{VCSH}, v{VCSH}, v{HREC+1}", f"v_add_f32 v{VCSH+1}, v{VCSH+1}, v{HREC+2}"])
        return L

    def fold_prep():
        L = []
        for t in range(2):
            L.append(fold_b_frag(a, fX(0, 0, t), VST + 2 * t, T, T + 1))
        for c in range(NT):
            L.append(fold_a_frag(a, fW(0, 0, c), VCS + c, T))
        if halo:
            L.append(fold_b_frag(a, fH(0) + 8, VSTH, T, T + 1))
            for m in range(2):
                L.append(fold_a_frag(a, fH(0) + 4 * m, VCSH + m, T))
        return L

    for s_ in reads(0): a(s_)
    if not isA:
        n = vq.n_after([('W', 1)])
        a(f"s_waitcnt vmcnt({n}) lgkmcnt(0)"); vq.done(n)
    else:
        a("s_waitcnt lgkmcnt(0)")
    a("s_barrier")

    for s in range(16):
        p = s & 1
        mf = mfmas(p, 0, first=(s == 0)) + mfmas(p, 1)
        if halo:
            hm = halo_mfmas(p, first=(s == 0))
            mf = mf[:4] + hm[:1] + mf[4:] + hm[1:]
            mf = mf[:-2] + [mf[-1], mf[-2]]
        G = []
        dm = []
        if not isA:
            if s + 5 <= 15: dm += wrap(dma_w(s + 5))
            if (s & 1) and (s + 1) // 2 + 2 <= 7: dm += wrap(dma_x((s + 1) // 2 + 2))
        for i in range(7):
            if BLK_STEP[i] == s: dm += wrap(w2_dma(i, i))
        rd = [[x] for x in reads(s + 1)] if s < 15 else []
        k = 0
        while dm or rd:
            if dm: G.append(dm.pop(0))
            for _ in range(2):
                if rd: G.append(rd.pop(0))
        if s == 9: G += wrap(rec_loads())
        if s == 14:
            def chk():
                n = vq.n_after(['R'])
                if n is not None:
                    a(f"s_waitcnt vmcnt({n})"); vq.done(n)
                rec_check(L_OK, L_RETRY)
            G.append(chk)
            G += rec_sum()
        if s == 15:
            if halo:
                G.append([f"v_and_b32 v{T}, 15, v1", f"v_lshlrev_b32 v{T}, 3, v{T}", f"v_add_u32 v{T}, {HST}, v{T}",
                          f"ds_read_b64 v[{VSTH}:{VSTH+1}], v{T}"])
                fp = fold_prep()
                G += fp[:2 + NT]
                G.append(["s_waitcnt lgkmcnt(0)"])
                G += fp[2 + NT:]
            else:
                G += fold_prep()
        interleave(a, mf, G)
        if s in (0, 1): colsum_block(s)
        if s == 14:
            lab = a.newlabel(P + "_nobump")
            if isA:
                a(f"s_or_b32 s{S_T0}, s{S_RB}, s{S_WAVE}\ns_cmp_lg_u32 s{S_T0}, 0\ns_cbranch_scc1 {lab}")
                a(f"s_lshl_b32 s{S_T0}, s{S_K16}, 7\ns_add_u32 s{S_T0}, s{S_T0}, 0x{EPC_OFF:x}\nv_mov_b32 v{T}, s{S_TAGC}")
                a("s_mov_b64 exec, 1")
                a(f"buffer_store_dword v{T}, off, s[{S_WS}:{S_WS+3}], s{S_T0} sc1")
                a("s_mov_b64 exec, -1")
                a.label(lab)
        if s < 15:
            w = "lgkmcnt(0)"
            if not isA:
                n = vq.n_after([('W', s + 2), ('X', (s + 2) >> 1)])
                if n is not None:
                    w = f"vmcnt({n}) lgkmcnt(0)"; vq.done(n)
            a(f"s_waitcnt {w}\ns_barrier")
    stamp(a, 4)
    for s_ in mfmas(0, 0): a(s_)
    if halo:
        for s_ in halo_mfmas(0): a(s_)

    nst = 0
    def gu_epilogue(tiles, chunk_sreg):
        nonlocal nst
        a(f"v_mul_f32 v{T}, v{VST+1}, v{VST+1}\nv_mul_f32 v{T+2}, v{VST+3}, v{VST+3}")
        a(f"v_lshlrev_b32 v{T+4}, 4, v1")
        for c in tiles:
            for t in range(2):
                b = acc(c, t)
                for r in range(0, 8, 2):
                    a(f"v_pk_mul_f32 v[{b+r}:{b+r+1}], v[{b+r}:{b+r+1}], v[{b+8+r}:{b+8+r+1}]")
                for r in range(0, 8, 2):
                    a(f"v_pk_mul_f32 v[{b+r}:{b+r+1}], v[{b+r}:{b+r+1}], v[{T+2*t}:{T+2*t+1}] op_sel_hi:[1,0]")
                for i in range(4):
                    a(f"v_cvt_pk_bf16_f32 v{b+8+i}, v{b+2*i}, v{b+2*i+1}")
                a(f"s_add_u32 s{S_T0}, s{chunk_sreg}, {c*1024 + t*ACT_T}")
                a(f"buffer_store_dwordx4 v[{b+8}:{b+11}], v{T+4}, s[{S_WS}:{S_WS+3}], s{S_T0} offen sc1")
                vq.push('H'); nst += 1

    a(f"s_lshl_b32 s{S_T1}, s{S_RB}, 2\ns_lshl_b32 s{S_T2}, s{S_RP}, 1\ns_add_u32 s{S_T1}, s{S_T1}, s{S_T2}\ns_mul_i32 s{S_T1}, s{S_T1}, {ACT_T}")
    if not att:
        a(f"s_mul_i32 s{S_T2}, s{S_CB}, 10\ns_add_u32 s{S_T2}, s{S_T2}, 64")
        if isA: a(f"s_mul_i32 s{S_T3}, s{S_IX}, 3")
        else: a(f"s_lshl_b32 s{S_T3}, s{S_IX}, 1\ns_add_u32 s{S_T3}, s{S_T3}, 6")
        a(f"s_add_u32 s{S_T2}, s{S_T2}, s{S_T3}\ns_lshl_b32 s{S_T2}, s{S_T2}, 10\ns_add_u32 s{S_T3}, s{S_T1}, s{S_T2}")
        gu_epilogue(list(range(NT)), S_T3)
    elif not isA:
        a(f"s_lshl_b32 s{S_T2}, s{S_CB}, 2\ns_lshl_b32 s{S_T3}, s{S_IX}, 1\ns_add_u32 s{S_T2}, s{S_T2}, s{S_T3}\ns_add_u32 s{S_T2}, s{S_T2}, 32")
        a(f"s_lshl_b32 s{S_T2}, s{S_T2}, 10\ns_add_u32 s{S_T3}, s{S_T1}, s{S_T2}")
        U2 = T + 6
        for m in range(2):
            for r in range(4):
                a(f"v_mul_f32 v{HACC+4*m+r}, v{HACC+4*m+r}, v{VSTH+1}")
            a(f"v_cvt_pk_bf16_f32 v{HACC+4*m}, v{HACC+4*m}, v{HACC+4*m+1}\nv_cvt_pk_bf16_f32 v{HACC+4*m+1}, v{HACC+4*m+2}, v{HACC+4*m+3}")
        a(f"v_bfe_u32 v{U2}, v1, 3, 1\nv_and_b32 v{U2+1}, 7, v1\nv_lshrrev_b32 v{U2+2}, 4, v1")
        a(f"s_lshr_b32 s{S_T0}, s{S_B}, 1\ns_lshl_b32 s{S_T0}, s{S_T0}, 3\ns_and_b32 s{S_T2}, s{S_B}, 1\ns_lshl_b32 s{S_T2}, s{S_T2}, 1\ns_add_u32 s{S_T0}, s{S_T0}, s{S_T2}")
        a(f"v_lshlrev_b32 v{U2+3}, 2, v{U2}\nv_and_b32 v{U2+4}, 1, v{U2+2}\nv_add_u32 v{U2+3}, v{U2+3}, v{U2+4}\nv_add_u32 v{U2+3}, s{S_T0}, v{U2+3}")
        a(f"v_mul_u32_u24 v{U2+3}, {KPL}, v{U2+3}\nv_lshlrev_b32 v{U2+4}, 4, v{U2+1}\nv_add_u32 v{U2+3}, v{U2+3}, v{U2+4}")
        a(f"v_lshrrev_b32 v{U2+4}, 1, v{U2+2}\nv_lshlrev_b32 v{U2+4}, 3, v{U2+4}\nv_add_u32 v{U2+3}, v{U2+3}, v{U2+4}")
        a(f"ds_write_b64 v{U2+3}, v[{HACC}:{HACC+1}] offset:{KS}")
        a(f"s_lshl_b32 s{S_T0}, s{S_T0}, 1")
        a(f"v_lshlrev_b32 v{U2+3}, 3, v{U2}\nv_add_u32 v{U2+3}, v{U2+3}, v{U2+2}\nv_add_u32 v{U2+3}, s{S_T0}, v{U2+3}")
        a(f"v_mul_u32_u24 v{U2+3}, {VPL}, v{U2+3}\nv_lshlrev_b32 v{U2+4}, 3, v{U2+1}\nv_add_u32 v{U2+3}, v{U2+3}, v{U2+4}")
        a(f"v_add_u32 v{U2+3}, {VS}, v{U2+3}")
        a(f"ds_write_b64 v{U2+3}, v[{HACC+4}:{HACC+5}]")
        gu_epilogue([0, 1], S_T3)
        a("s_waitcnt lgkmcnt(0)\ns_barrier")
    else:
        a(f"v_mul_f32 v{T}, {f32(QSCALE)}, v{VST+1}\nv_mul_f32 v{T+2}, {f32(QSCALE)}, v{VST+3}")
        for c in (1, 2, 0):
            for t in range(2):
                b = acc(c, t)
                if c == 0: sc, sel = T + 2 * t, "op_sel_hi:[1,0]"
                else: sc, sel = VST + 2 * t, "op_sel:[0,1] op_sel_hi:[1,1]"
                for r in range(0, 16, 2):
                    a(f"v_pk_mul_f32 v[{b+r}:{b+r+1}], v[{b+r}:{b+r+1}], v[{sc}:{sc+1}] {sel}")
                for i in range(8):
                    a(f"v_cvt_pk_bf16_f32 v{b+i}, v{b+2*i}, v{b+2*i+1}")
                if c < 2:
                    for i in range(4):
                        a(f"v_permlane32_swap_b32 v{b+i}, v{b+4+i}")
            if c == 1:
                a(f"v_and_b32 v{T+5}, 31, v1\nv_lshrrev_b32 v{T+6}, 5, v1")
                a(f"s_lshl_b32 s{S_T0}, s{S_RP}, 5\ns_add_u32 s{S_T0}, s{S_T0}, 8")
                a(f"v_add_u32 v{T+5}, s{S_T0}, v{T+5}")
                a(f"s_mul_i32 s{S_T0}, s{S_IX}, {8*KPL}\ns_add_u32 s{S_T0}, s{S_T0}, {KS}")
                a(f"v_mul_u32_u24 v{T+4}, {2*KPL}, v{T+6}\nv_lshlrev_b32 v{T+7}, 4, v{T+5}\nv_add_u32 v{T+4}, v{T+4}, v{T+7}\nv_add_u32 v{T+4}, s{S_T0}, v{T+4}")
                VK = T + 4
                for t in range(2):
                    for h in range(2):
                        b = acc(1, t) + 4 * h
                        a(f"ds_write_b128 v{VK}, v[{b}:{b+3}] offset:{t*4*KPL + h*KPL}")
            if c == 2:
                a(f"s_mul_i32 s{S_T2}, s{S_IX}, {16*VPL}\ns_add_u32 s{S_T2}, s{S_T2}, {VS}")
                a(f"v_mul_u32_u24 v{T+7}, {VPL}, v{T+6}\nv_lshlrev_b32 v{T+8}, 3, v{T+5}\nv_add_u32 v{T+7}, v{T+7}, v{T+8}\nv_add_u32 v{T+7}, s{S_T2}, v{T+7}")
                for t in range(2):
                    for e in range(2):
                        for i in range(2):
                            b = acc(2, t) + 4 * e + 2 * i
                            a(f"ds_write_b64 v{T+7}, v[{b}:{b+1}] offset:{t*8*VPL + e*4*VPL + 2*i*VPL}")
        a("s_waitcnt lgkmcnt(0)\ns_barrier")
        a(f"v_subrev_u32 v{VK}, 128, v{VK}")
        KD = 160
        def kd(t, d): return KD + (t * 2 + (d - 1)) * 8
        for t in range(2):
            for d in (1, 2):
                for h in range(2):
                    a(f"ds_read_b128 v[{kd(t,d)+4*h}:{kd(t,d)+4*h+3}], v{VK} offset:{t*4*KPL + h*KPL + 128 - 64*d}")
        a(f"v_lshrrev_b32 v{T+6}, 4, v1\nv_bfe_u32 v{T+7}, v1, 2, 2\nv_and_b32 v{T+8}, 3, v1")
        a(f"v_and_b32 v{T+9}, 1, v{T+6}\nv_lshlrev_b32 v{T+9}, 4, v{T+9}\nv_lshlrev_b32 v{T+8}, 2, v{T+8}")
        a(f"v_add_u32 v{T+9}, v{T+9}, v{T+8}\nv_add_u32 v{T+9}, v{T+9}, v{T+7}")
        a(f"s_lshl_b32 s{S_T3}, s{S_RP}, 5\nv_add_u32 v{T+9}, s{S_T3}, v{T+9}\nv_lshlrev_b32 v{T+9}, 3, v{T+9}")
        a(f"v_lshrrev_b32 v{T+6}, 1, v{T+6}\nv_mul_u32_u24 v{T+6}, {4*VPL}, v{T+6}\nv_add_u32 v{T+9}, v{T+9}, v{T+6}\nv_add_u32 v{T+9}, s{S_T2}, v{T+9}")
        VV = T + 9
        VT = 192
        def vt(t, d, dd): return VT + ((t * 3 + d) * 4 + dd) * 2
        a(f"s_or_b32 s{S_T2}, s{S_RB}, s{S_RP}\ns_cmp_eq_u32 s{S_T2}, 0\ns_cselect_b32 s{S_T2}, {f32(-1e9)}, 0")
        a(f"v_and_b32 v{T+10}, 31, v1\nv_mov_b32 v{T+11}, s{S_T2}")
        a(f"v_cmp_gt_u32 vcc, 4, v{T+10}\nv_cndmask_b32 v{T+12}, 0, v{T+11}, vcc")
        a(f"v_cmp_gt_u32 vcc, 8, v{T+10}\nv_cndmask_b32 v{T+13}, 0, v{T+11}, vcc")
        SB = acc(2, 0)
        def S(t, d): return SB + (t * 3 + d) * 4
        for t in range(2):
            for r in range(4):
                a(f"v_mov_b32 v{S(t,0)+r}, 0\nv_mov_b32 v{S(t,1)+r}, v{T+12}\nv_mov_b32 v{S(t,2)+r}, v{T+13}")
        a("s_waitcnt lgkmcnt(0)")
        for t in range(2):
            for d in range(3):
                for dd in range(4):
                    a(f"ds_read_b64_tr_b16 v[{vt(t,d,dd)}:{vt(t,d,dd)+1}], v{VV} offset:{t*8*VPL + dd*VPL + 64 - 32*d}")
        for ks in range(4):
            for t in range(2):
                q = acc(0, t) + 2 * ks
                for d in range(3):
                    ka = (acc(1, t) if d == 0 else kd(t, d)) + 2 * ks
                    a(f"v_mfma_f32_4x4x4_16b_bf16 v[{S(t,d)}:{S(t,d)+3}], v[{ka}:{ka+1}], v[{q}:{q+1}], v[{S(t,d)}:{S(t,d)+3}]")
        a(f"s_mov_b32 s{S_M1}, 0xeeeeeeee\ns_mov_b32 s{S_M1+1}, 0xeeeeeeee\ns_mov_b32 s{S_M2}, 0xcccccccc\ns_mov_b32 s{S_M2+1}, 0xcccccccc\ns_mov_b32 s{S_M3}, 0x88888888\ns_mov_b32 s{S_M3+1}, 0x88888888")
        a(f"v_mov_b32 v{T+14}, 0xffff\nv_mov_b32 v{T+18}, 0xffffffff")
        a(f"v_cndmask_b32 v{T+14}, v{T+14}, v{T+18}, s[{S_M1}:{S_M1+1}]")
        a(f"v_mov_b32 v{T+15}, 0\nv_mov_b32 v{T+19}, 0xffff\nv_cndmask_b32 v{T+15}, v{T+15}, v{T+19}, s[{S_M2}:{S_M2+1}]\nv_cndmask_b32 v{T+15}, v{T+15}, v{T+18}, s[{S_M3}:{S_M3+1}]")
        a(f"v_not_b32 v{T+16}, v{T+14}\nv_not_b32 v{T+17}, v{T+15}")
        for t in range(2):
            s0, s1, s2 = S(t, 0), S(t, 1), S(t, 2)
            m = acc(1, t) + 8
            for r, mk in ((1, S_M1), (2, S_M2), (3, S_M3)):
                a(f"v_cndmask_b32 v{s0+r}, v{s2+r}, v{s0+r}, s[{mk}:{mk+1}]")
            a(f"v_max3_f32 v{m}, v{s0}, v{s0+1}, v{s0+2}\nv_max3_f32 v{m+1}, v{s0+3}, v{s1}, v{s1+1}")
            a(f"v_max3_f32 v{m}, v{s1+2}, v{s1+3}, v{m}\nv_max_f32 v{m}, v{m}, v{m+1}")
            vals = [s0 + r for r in range(4)] + [s1 + r for r in range(4)]
            for v in vals: a(f"v_sub_f32 v{v}, v{v}, v{m}")
            for v in vals: a(f"v_exp_f32 v{v}, v{v}")
            a(f"v_add_f32 v{m}, v{s0}, v{s0+1}\nv_add_f32 v{m+1}, v{s0+2}, v{s0+3}\nv_add_f32 v{m+2}, v{s1}, v{s1+1}\nv_add_f32 v{m+3}, v{s1+2}, v{s1+3}")
            a(f"v_add_f32 v{m}, v{m}, v{m+1}\nv_add_f32 v{m+2}, v{m+2}, v{m+3}\nv_add_f32 v{m}, v{m}, v{m+2}")
            a(f"v_rcp_f32 v{m}, v{m}")
            for v in vals: a(f"v_mul_f32 v{v}, v{v}, v{m}")
            pb = acc(0, t) + 8
            a(f"v_cvt_pk_bf16_f32 v{pb+6}, v{s0}, v{s0+1}\nv_cvt_pk_bf16_f32 v{pb+7}, v{s0+2}, v{s0+3}")
            a(f"v_cvt_pk_bf16_f32 v{pb+2}, v{s1}, v{s1+1}\nv_cvt_pk_bf16_f32 v{pb+3}, v{s1+2}, v{s1+3}")
            a(f"v_and_b32 v{pb}, v{pb+6}, v{T+14}\nv_and_b32 v{pb+1}, v{pb+7}, v{T+15}")
            a(f"v_and_b32 v{pb+4}, v{pb+6}, v{T+16}\nv_and_b32 v{pb+5}, v{pb+7}, v{T+17}")
        a("s_waitcnt lgkmcnt(0)")
        def O(t, dd): return KD + (t * 4 + dd) * 4
        for d in range(3):
            for t in range(2):
                pb = acc(0, t) + 8 + 2 * d
                for dd in range(4):
                    cin = "0" if d == 0 else f"v[{O(t,dd)}:{O(t,dd)+3}]"
                    a(f"v_mfma_f32_4x4x4_16b_bf16 v[{O(t,dd)}:{O(t,dd)+3}], v[{vt(t,d,dd)}:{vt(t,d,dd)+1}], v[{pb}:{pb+1}], {cin}")
        a(f"v_and_b32 v{T}, 31, v1\nv_lshlrev_b32 v{T}, 4, v{T}\nv_lshrrev_b32 v{T+1}, 5, v1\nv_lshlrev_b32 v{T+1}, 10, v{T+1}\nv_add_u32 v{T}, v{T}, v{T+1}")
        a(f"s_lshl_b32 s{S_T2}, s{S_CB}, 2\ns_lshl_b32 s{S_T3}, s{S_IX}, 1\ns_add_u32 s{S_T2}, s{S_T2}, s{S_T3}\ns_lshl_b32 s{S_T2}, s{S_T2}, 10\ns_add_u32 s{S_T3}, s{S_T1}, s{S_T2}")
        for t in range(2):
            ob = acc(2, t)
            for k, dd in enumerate((0, 2, 1, 3)):
                a(f"v_cvt_pk_bf16_f32 v{ob+2*k}, v{O(t,dd)}, v{O(t,dd)+1}\nv_cvt_pk_bf16_f32 v{ob+2*k+1}, v{O(t,dd)+2}, v{O(t,dd)+3}")
            a(f"s_add_u32 s{S_T0}, s{S_T3}, {t*ACT_T}")
            a(f"buffer_store_dwordx4 v[{ob}:{ob+3}], v{T}, s[{S_WS}:{S_WS+3}], s{S_T0} offen sc1"); vq.push('H')
            a(f"buffer_store_dwordx4 v[{ob+4}:{ob+7}], v{T}, s[{S_WS}:{S_WS+3}], s{S_T0} offen offset:512 sc1"); vq.push('H')
    stamp(a, 5)

    A2 = 16
    def ac2(rt, c): return A2 + (rt * 2 + c) * 16
    WR = 80
    def wreg(i, c): return WR + i * 8 + c * 4
    WF = 168
    def wf(pp, c): return WF + pp * 8 + c * 4
    AR = 184
    def act(n): return AR + (n % 18) * 4
    VR0, VACT, VOUT, VRES, VRA, VRB = 2, 3, 4, 8, 6, 7
    T = 16
    a(f"v_lshrrev_b32 v{T}, 4, v1\nv_bfe_u32 v{T+1}, v1, 2, 2\nv_and_b32 v{T+2}, 3, v1")
    a(f"v_lshrrev_b32 v5, 1, v{T}\nv_lshlrev_b32 v5, 3, v5\nv_add_u32 v5, v5, v{T+1}\nv_lshlrev_b32 v5, 7, v5")
    a(f"v_lshrrev_b32 v{T+1}, 1, v{T+1}\nv_lshlrev_b32 v{T+1}, 6, v{T+1}\nv_add_u32 v5, v5, v{T+1}")
    a(f"v_and_b32 v{T}, 1, v{T}\nv_lshlrev_b32 v{T}, 5, v{T}\nv_add_u32 v5, v5, v{T}\nv_lshlrev_b32 v{T+2}, 3, v{T+2}\nv_add_u32 v5, v5, v{T+2}")
    a(f"v_add_u32 v{VR0}, s{S_W2D}, v5")
    a(f"v_lshlrev_b32 v{VACT}, 4, v1")

    def w2_reads(blk, dsts):
        L = [f"v_add_u32 v{VRA}, {BLK[blk]}, v{VR0}", f"v_xor_b32 v{VRB}, 64, v{VRA}"]
        for c in range(2):
            for h in range(2):
                L.append(f"ds_read_b64_tr_b16 v[{dsts[c]+2*h}:{dsts[c]+2*h+1}], v{VRA if c == 0 else VRB} offset:{h*512}")
        return L
    blk_of = {i: i for i in range(7)}
    n = vq.n_after([('D', i) for i in range(7)])
    a(f"s_waitcnt vmcnt({n})"); vq.done(n)
    for i in range(7):
        for s_ in w2_reads(i, [wreg(i, 0), wreg(i, 1)]): a(s_)
    a("s_waitcnt lgkmcnt(0)")
    for i in range(7, 14):
        blk_of[i] = i - 7
        emit_groups(w2_dma(i, i - 7))
    n = vq.n_after(['H', 'SS'])
    a(f"s_waitcnt vmcnt({n})"); vq.done(n)
    stamp(a, 6)
    cnt_addr = CNT_O if (att and isA) else CNT_H
    cnt_n = 8 if not att else 4
    lab = a.newlabel(P + "_nosig")
    a(f"v_mov_b32 v{T}, {cnt_addr}\nv_mov_b32 v{T+1}, 1")
    a("s_mov_b64 exec, 1")
    a(f"ds_add_rtn_u32 v{T+2}, v{T}, v{T+1}\ns_waitcnt lgkmcnt(0)\nv_readfirstlane_b32 s{S_T0}, v{T+2}")
    a(f"s_cmp_lg_u32 s{S_T0}, {cnt_n-1}\ns_cbranch_scc1 {lab}")
    if att and isA:
        a(f"s_lshl_b32 s{S_T0}, s{S_CB}, 2\ns_add_u32 s{S_T0}, s{S_T0}, 64")
    else:
        a(f"s_lshl_b32 s{S_T0}, s{S_K16}, 2")
    a(f"s_lshl_b32 s{S_T1}, s{S_RB}, 7\ns_add_u32 s{S_T0}, s{S_T0}, s{S_T1}\ns_add_u32 s{S_T0}, s{S_T0}, 0x{FLAG_OFF:x}")
    a(f"v_mov_b32 v{T}, s{S_TAG}")
    a(f"buffer_store_dword v{T}, off, s[{S_WS}:{S_WS+3}], s{S_T0} sc1")
    a.label(lab)
    a("s_mov_b64 exec, -1")
    n = vq.n_after([('D', i) for i in range(7, 11)])
    a(f"s_waitcnt vmcnt({n})"); vq.done(n)
    for i in range(7, 11):
        for s_ in w2_reads(blk_of[i], [wreg(i, 0), wreg(i, 1)]): a(s_)
    a("s_waitcnt lgkmcnt(0)")
    for i in range(14, 18):
        blk_of[i] = blk_of[i - 7]
        emit_groups(w2_dma(i, blk_of[i]))
    a(f"v_and_b32 v{T}, 31, v1\nv_lshlrev_b32 v{T}, 11, v{T}\nv_lshrrev_b32 v{T+1}, 5, v1\nv_lshlrev_b32 v{T+1}, 4, v{T+1}\nv_add_u32 v{VOUT}, v{T}, v{T+1}")
    a(f"s_lshl_b32 s{S_OUTO}, s{S_RPP}, 16\ns_and_b32 s{S_T0}, s{S_WAVE}, 1\ns_lshl_b32 s{S_T0}, s{S_T0}, 10\ns_add_u32 s{S_OUTO}, s{S_OUTO}, s{S_T0}")
    a(f"s_lshl_b32 s{S_T0}, s{S_CT}, 7\ns_add_u32 s{S_OUTO}, s{S_OUTO}, s{S_T0}\ns_lshr_b32 s{S_T0}, s{S_WAVE}, 1\ns_lshl_b32 s{S_T0}, s{S_T0}, 5\ns_add_u32 s{S_OUTO}, s{S_OUTO}, s{S_T0}")
    a(f"buffer_load_dwordx4 v[{VRES}:{VRES+3}], v{VOUT}, s[{S_X}:{S_X+3}], s{S_OUTO} offen"); vq.push('RES')
    if isA:
        l_sp, l_go = a.newlabel(P + "_spin"), a.newlabel(P + "_go")
        a(f"s_cmp_lg_u32 s{S_WAVE}, 0\ns_cbranch_scc1 {l_sp}")
        poll_flags(a, 24, RDY_O, P, T)
        a(f"s_cmp_lg_u32 s{S_K16}, 0\ns_cbranch_scc1 {l_go}")
        a(f"s_lshl_b32 s{S_T0}, s{S_RB}, 7\ns_add_u32 s{S_T0}, s{S_T0}, 0x{EP_OFF:x}\nv_mov_b32 v{T}, s{S_TAG}")
        a("s_mov_b64 exec, 1")
        a(f"buffer_store_dword v{T}, off, s[{S_WS}:{S_WS+3}], s{S_T0} sc1")
        a("s_mov_b64 exec, -1")
        a(f"s_branch {l_go}")
        a.label(l_sp)
        spin_lds(a, RDY_O, P, T)
        a.label(l_go)
    else:
        l_sp, l_go = a.newlabel(P + "_spin"), a.newlabel(P + "_go")
        a(f"s_cmp_lg_u32 s{S_WAVE}, 4\ns_cbranch_scc1 {l_sp}")
        poll_flags(a, 16, RDY_H, P, T)
        a(f"s_branch {l_go}")
        a.label(l_sp)
        spin_lds(a, RDY_H, P, T)
        a.label(l_go)
    stamp(a, 7)
    def chunk_of(i):
        if isA: return (32 + 4 * i) if i < 10 else 4 * (i - 10)
        return 72 + 4 * i
    def actload(n):
        i, rt = n >> 1, n & 1
        a(f"s_add_u32 s{S_T0}, s{S_ACTB}, {chunk_of(i)*1024 + rt*ACT_T}")
        a(f"buffer_load_dwordx4 v[{act(n)}:{act(n)+3}], v{VACT}, s[{S_WS}:{S_WS+3}], s{S_T0} offen sc1")
        vq.push(('A', n))
    for n_ in range(18): actload(n_)
    for i in range(18):
        if i < 11: wsrc = [wreg(i, 0), wreg(i, 1)]
        else: wsrc = [wf(i & 1, 0), wf(i & 1, 1)]
        for rt in range(2):
            n_ = 2 * i + rt
            n = vq.n_after([('A', n_)])
            w = f"s_waitcnt vmcnt({n})"; vq.done(n)
            if rt == 0 and i >= 11: w += " lgkmcnt(0)"
            a(w)
            if rt == 0 and 11 <= i + 1 < 18:
                for s_ in w2_reads(blk_of[i + 1], [wf((i + 1) & 1, 0), wf((i + 1) & 1, 1)]): a(s_)
            for c in range(2):
                cin = "0" if i == 0 else f"v[{ac2(rt,c)}:{ac2(rt,c)+15}]"
                a(f"v_mfma_f32_32x32x16_bf16 v[{ac2(rt,c)}:{ac2(rt,c)+15}], v[{wsrc[c]}:{wsrc[c]+3}], v[{act(n_)}:{act(n_)+3}], {cin}")
            if n_ + 18 < 36: actload(n_ + 18)
    stamp(a, 8)
    T = 12
    a("s_barrier")
    a(f"v_and_b32 v{T}, 31, v1\nv_mul_u32_u24 v{T}, {PSTR}, v{T}\nv_lshrrev_b32 v{T+1}, 5, v1\nv_lshlrev_b32 v{T+1}, 7, v{T+1}\nv_add_u32 v{T}, v{T}, v{T+1}")
    a(f"s_mul_i32 s{S_T0}, s{S_WAVE}, {PWAVE}\nv_add_u32 v{T+2}, s{S_T0}, v{T}")
    for rt in range(2):
        for c in range(2):
            for q in range(4):
                b = ac2(rt, c) + 4 * q
                a(f"ds_write_b128 v{T+2}, v[{b}:{b+3}] offset:{rt*32*PSTR + (4*c+q)*16}")
    a(f"v_and_b32 v{T}, 31, v1\nv_mul_u32_u24 v{T}, {PSTR}, v{T}\nv_lshrrev_b32 v{T+1}, 5, v1\nv_lshlrev_b32 v{T+1}, 4, v{T+1}\nv_add_u32 v{T}, v{T}, v{T+1}")
    a(f"s_and_b32 s{S_T0}, s{S_WAVE}, 1\ns_mul_i32 s{S_T0}, s{S_T0}, {32*PSTR}\ns_lshr_b32 s{S_T1}, s{S_WAVE}, 1\ns_lshl_b32 s{S_T1}, s{S_T1}, 5\ns_add_u32 s{S_T0}, s{S_T0}, s{S_T1}")
    a(f"v_add_u32 v{T}, s{S_T0}, v{T}")
    a(f"v_add_u32 v{T+1}, {4*PWAVE}, v{T}")
    a("s_waitcnt lgkmcnt(0)\ns_barrier")
    for pp in range(8):
        va = T if pp < 4 else T + 1
        for h in range(2):
            a(f"ds_read_b128 v[{80+pp*8+h*4}:{80+pp*8+h*4+3}], v{va} offset:{(pp%4)*PWAVE + h*128}")
    for i in range(4):
        a(f"v_lshlrev_b32 v{16+2*i}, 16, v{VRES+i}\nv_and_b32 v{17+2*i}, 0xffff0000, v{VRES+i}")
    for pp in range(8):
        a(f"s_waitcnt lgkmcnt({14-2*pp})")
        for k in range(0, 8, 2):
            a(f"v_pk_add_f32 v[{16+k}:{17+k}], v[{16+k}:{17+k}], v[{80+pp*8+k}:{80+pp*8+k+1}]")
    for i in range(4):
        a(f"v_cvt_pk_bf16_f32 v{24+i}, v{16+2*i}, v{17+2*i}")
    a(f"buffer_store_dwordx4 v[24:27], v{VOUT}, s[{S_OUT}:{S_OUT+3}], s{S_OUTO} offen")
    stamp(a, 9)
    if PROF:
        a("s_waitcnt vmcnt(0)")
        stamp(a, 10, True)
        a("s_waitcnt lgkmcnt(0)")
        for k in range(11):
            a(f"v_writelane_b32 v2, s{80+2*k}, {k}")
        a(f"v_lshlrev_b32 v3, 2, v1")
        a(f"s_lshl_b32 s{S_T0}, s2, 3\ns_add_u32 s{S_T0}, s{S_T0}, s{S_WAVE}\ns_lshl_b32 s{S_T0}, s{S_T0}, 6\ns_add_u32 s{S_T0}, s{S_T0}, 0x{PROF_OFF:x}")
        a("s_mov_b64 exec, 0xffff")
        a(f"buffer_store_dword v2, v3, s[{S_WS}:{S_WS+3}], s{S_T0} offen")
    a("s_endpgm")
    a.label(L_RETRY)
    a(f"s_mov_b32 s{S_T3}, 0")
    l_r = a.newlabel(P + "_rl")
    a.label(l_r)
    sv = vq.q
    vq.q = []
    emit_groups(rec_loads())
    vq.q = sv
    a("s_waitcnt vmcnt(0)")
    a(f"s_add_u32 s{S_T3}, s{S_T3}, 1\ns_cmp_gt_u32 s{S_T3}, {SPIN_G}\ns_cbranch_scc1 {L_OK}")
    rec_check(a.newlabel(P + "_rok"), l_r)
    a(f"s_branch {L_OK}")


def gen_kernel():
    a = Asm()
    a.raw(f".globl {KNAME}\n.p2align 8\n.type {KNAME},@function\n{KNAME}:")
    a("s_cmp_ge_u32 s2, 256\ns_cbranch_scc1 K_END")
    a("s_load_dwordx2 s[4:5], s[0:1], 0\ns_load_dwordx2 s[6:7], s[0:1], 8\ns_load_dwordx2 s[8:9], s[0:1], 32\n"
      "s_load_dwordx2 s[10:11], s[0:1], 40\ns_load_dwordx2 s[12:13], s[0:1], 72\ns_load_dwordx2 s[14:15], s[0:1], 16\n"
      f"s_load_dwordx2 s[{S_WD+4}:{S_WD+5}], s[0:1], 48\ns_load_dwordx2 s[{S_OUT+2}:{S_OUT+3}], s[0:1], 56")
    a("v_and_b32 v1, 63, v0\nv_lshrrev_b32 v2, 6, v0")
    a(f"v_readfirstlane_b32 s{S_WAVE}, v2")
    a(f"s_and_b32 s3, s2, 7\ns_lshr_b32 s{S_T0}, s2, 3")
    a(f"s_and_b32 s{S_RB}, s3, 1\ns_lshl_b32 s{S_RB}, s{S_RB}, 3\ns_and_b32 s{S_T1}, s{S_T0}, 7\ns_add_u32 s{S_RB}, s{S_RB}, s{S_T1}")
    a(f"s_lshr_b32 s{S_SEL}, s{S_T0}, 3")
    a(f"s_lshr_b32 s3, s3, 1\ns_lshl_b32 s3, s3, 1\ns_and_b32 s{S_T1}, s{S_SEL}, 1\ns_add_u32 s{S_CB}, s3, s{S_T1}")
    a(f"s_lshr_b32 s{S_T2}, s{S_SEL}, 1")
    a(f"s_lshl_b32 s{S_K16}, s{S_T2}, 3\ns_add_u32 s{S_K16}, s{S_K16}, s{S_CB}")
    a(f"s_and_b32 s{S_B}, s{S_WAVE}, 3\ns_lshr_b32 s{S_RP}, s{S_B}, 1\ns_and_b32 s{S_IX}, s{S_B}, 1")
    a(f"s_cmp_lt_u32 s{S_WAVE}, 4\ns_cselect_b32 s{S_T3}, 0, 1\ns_lshl_b32 s{S_T2}, s{S_T2}, 1\ns_add_u32 s{S_T2}, s{S_T2}, s{S_T3}")
    a(f"s_cmp_eq_u32 s{S_T2}, 1\ns_cbranch_scc1 RattB")
    a(f"s_cmp_eq_u32 s{S_T2}, 2\ns_cbranch_scc1 RffnA")
    a(f"s_cmp_eq_u32 s{S_T2}, 3\ns_cbranch_scc1 RffnB")
    gen_role(a, 'att', 'A')
    gen_role(a, 'att', 'B')
    gen_role(a, 'ffn', 'A')
    gen_role(a, 'ffn', 'B')
    a.label("K_END")
    a("s_endpgm")
    a.finalize()
    return a

def build(path):
    hdr = open("cdna_kernels/" + NAME + ".s.ref").read().split("\n")
    comments = [l for l in hdr if l.startswith(";") and "@launch" not in l and "Override launch" not in l and "grid=ceil" not in l]
    k = gen_kernel()
    out = "\n".join(comments) + "\n"
    out += f"; @launch grid=(256,1,1) block=(512,1,1) lds={LDS_SIZE}\n"
    out += '.amdgcn_target "amdgcn-amd-amdhsa--gfx950"\n.text\n'
    out += k.text()
    out += ('.section .rodata,"a"\n.p2align 6\n'
            f".amdhsa_kernel {KNAME}\n  .amdhsa_next_free_vgpr 256\n  .amdhsa_next_free_sgpr 102\n"
            "  .amdhsa_accum_offset 256\n  .amdhsa_group_segment_fixed_size 0\n  .amdhsa_kernarg_size 80\n"
            "  .amdhsa_user_sgpr_count 2\n  .amdhsa_user_sgpr_kernarg_segment_ptr 1\n"
            "  .amdhsa_system_sgpr_workgroup_id_x 1\n.end_amdhsa_kernel\n")
    open(path, "w").write(out)
    print("instr count", k.count(), "pads", getattr(k, 'npad', 0), "bytes", len(out))

if __name__ == "__main__":
    if len(sys.argv) > 2 and sys.argv[2] == "prof": PROF = True
    build(sys.argv[1] if len(sys.argv) > 1 else "v2.s")
```

```python
import sys, struct
from asmfw import Asm

NAME = "parallel_sum__sliding_local_dilated__glu_gated_bilinear__prompt"
KNAME = NAME + "_kernel"

ACT_T = 144 * 1024
STATS_OFF = 0x900000
CSP_OFF = 0x910000
FLAG_OFF = 0x990000
EP_OFF = 0x991000
EPC_OFF = 0x992000
PROF_OFF = 0xA00000
WS_SIZE = 0x1000000
LCG_A, LCG_C = 0x9E3779B1, 0x7F4A7C15

WSLOT = 20608
XRING = 5 * WSLOT
XSLOT = 18432
MISC = XRING + 3 * XSLOT
LDS_SIZE = 163840
CNT_H, CNT_O, RDY_H, RDY_O = MISC, MISC + 4, MISC + 8, MISC + 12
HST = MISC + 64
XCH = MISC + 256
FFN_UOFF = 10272
KS = 0
VS = XRING + XSLOT
KPL = 72 * 16
VPL = 72 * 8
BLK = [20608, XRING + 2 * XSLOT, 20608 + 16384, 20608 + 2 * 16384, 20608 + 3 * 16384, 20608 + 4 * 16384, 20608 + 5 * 16384]
BLK_STEP = [11, 11, 12, 13, 14, 14, 14]
PSTR = 272
PWAVE = 64 * PSTR

QSCALE = 0.25 * 1.4426950408889634
def f32(x):
    return "0x%08x" % struct.unpack('<I', struct.pack('<f', x))[0]

S_X, S_W0, S_WG, S_WU, S_WS, S_WO, S_WD, S_OUT = 16, 20, 24, 28, 32, 36, 40, 44
S_RB, S_CB, S_WAVE, S_RP, S_IX, S_B, S_K16, S_TAG, S_TAGC = 48, 49, 50, 51, 52, 53, 54, 55, 56
S_WDST, S_XDST, S_SRC0, S_SRC1, S_XSRC = 57, 58, 59, 60, 61
S_XB = [62, 63]
S_T0, S_T1, S_T2, S_T3 = 64, 65, 66, 67
S_CSDO, S_RPP, S_CT, S_W2B, S_ACTB, S_OUTO, S_W2D = 68, 69, 70, 71, 72, 73, 74
S_WB = [75, 76]; S_GB = [77, 78]
S_CX = 59
S_SEL = 79
S_M1, S_M2, S_M3 = 4, 6, 8
S_P0, S_P1, S_P2 = 10, 12, 14

PROF = False
PROF2 = False
PROF2_OFF = 0xB00000
SPIN_G = 200000
SPIN_L = 4000000

def stamp(a, k, real=False):
    if PROF:
        a(f"{'s_memrealtime' if real else 's_memtime'} s[{80+2*k}:{81+2*k}]")

def srd(a, d, ptr, nbytes):
    a(f"s_mov_b32 s{d}, s{ptr}\ns_mov_b32 s{d+1}, s{ptr+1}\ns_mov_b32 s{d+2}, 0x{nbytes:x}\ns_mov_b32 s{d+3}, 0x00020000")

class VQ:
    def __init__(self): self.q = []
    def push(self, tag): self.q.append(tag)
    def n_after(self, tags):
        idx = [k for k, q in enumerate(self.q) if q in tags]
        if not idx: return None
        return min(len(self.q) - 1 - max(idx), 63)
    def done(self, n):
        self.q = self.q[len(self.q) - n:] if n else []

def row_sum(a, v, t, lanes):
    for n in (8, 4, 2, 1):
        a(f"v_add_f32_dpp v{v}, v{v}, v{v} row_ror:{n} row_mask:0xf bank_mask:0xf")
    if lanes == 32:
        a(f"v_mov_b32 v{t}, v{v}")
        a(f"v_permlane16_swap_b32 v{v}, v{t}")
        a(f"v_add_f32 v{v}, v{v}, v{t}")

def row_stats(a, src, nd, un, res, lanes):
    for i in range(nd):
        a(f"v_lshlrev_b32 v{un+2*i}, 16, v{src+i}\nv_and_b32 v{un+2*i+1}, 0xffff0000, v{src+i}")
    a(f"v_pk_add_f32 v[{res+2}:{res+3}], v[{un}:{un+1}], v[{un+2}:{un+3}]")
    for i in range(2, nd):
        a(f"v_pk_add_f32 v[{res+2}:{res+3}], v[{res+2}:{res+3}], v[{un+2*i}:{un+2*i+1}]")
    a(f"v_add_f32 v{res}, v{res+2}, v{res+3}")
    row_sum(a, res, res + 2, lanes)
    a(f"v_mul_f32 v{res}, {f32(1/512)}, v{res}")
    for i in range(nd):
        a(f"v_pk_add_f32 v[{un+2*i}:{un+2*i+1}], v[{un+2*i}:{un+2*i+1}], v[{res}:{res+1}] op_sel_hi:[1,0] neg_lo:[0,1] neg_hi:[0,1]")
    a(f"v_pk_mul_f32 v[{res+2}:{res+3}], v[{un}:{un+1}], v[{un}:{un+1}]")
    for i in range(1, nd):
        a(f"v_pk_fma_f32 v[{res+2}:{res+3}], v[{un+2*i}:{un+2*i+1}], v[{un+2*i}:{un+2*i+1}], v[{res+2}:{res+3}]")
    a(f"v_add_f32 v{res+1}, v{res+2}, v{res+3}")
    row_sum(a, res + 1, res + 2, lanes)
    a(f"v_mov_b32 v{res+2}, {f32(1e-5)}")
    a(f"v_fmac_f32 v{res+2}, {f32(1/512)}, v{res+1}")
    a(f"v_rsq_f32 v{res+1}, v{res+2}")

def fold_a_frag(a, dst, c, tmp):
    return [f"v_cvt_pk_bf16_f32 v{dst}, v{c}, v{c}",
            f"v_and_b32 v{tmp}, 0xffff0000, v{dst}",
            f"v_sub_f32 v{tmp}, v{c}, v{tmp}",
            f"v_cvt_pk_bf16_f32 v{dst+1}, v{tmp}, v{tmp}",
            f"v_mov_b32 v{dst+2}, 0", f"v_mov_b32 v{dst+3}, 0"]

def fold_b_frag(a, dst, mean, tmp, tmp2):
    return [f"v_sub_f32 v{tmp2}, 0, v{mean}",
            f"v_cvt_pk_bf16_f32 v{tmp}, v{tmp2}, v{tmp2}",
            f"v_and_b32 v{tmp}, 0xffff0000, v{tmp}",
            f"v_sub_f32 v{tmp}, v{tmp2}, v{tmp}",
            f"v_cvt_pk_bf16_f32 v{dst}, v{tmp2}, v{tmp}",
            f"v_mov_b32 v{dst+1}, v{dst}",
            f"v_mov_b32 v{dst+2}, 0", f"v_mov_b32 v{dst+3}, 0"]

def interleave(a, mf, groups, skip_last=1):
    n = max(len(mf) - skip_last, 1)
    k = len(groups)
    idx = 0
    def emit(g):
        if callable(g): g()
        else:
            for s in g: a(s)
    for i, m in enumerate(mf):
        a(m)
        upto = min(k, (k * (i + 1) + n - 1) // n)
        while idx < upto:
            emit(groups[idx]); idx += 1
    while idx < k:
        emit(groups[idx]); idx += 1

def spin_lds(a, addr, name, vt):
    l0, l1 = a.newlabel(name + "_sp"), a.newlabel(name + "_ok")
    a(f"v_mov_b32 v{vt}, {addr}\ns_mov_b32 s{S_T1}, 0")
    a.label(l0)
    a(f"ds_read_b32 v{vt+1}, v{vt}\ns_waitcnt lgkmcnt(0)\nv_readfirstlane_b32 s{S_T0}, v{vt+1}")
    a(f"s_cmp_lg_u32 s{S_T0}, 0\ns_cbranch_scc1 {l1}")
    a(f"s_add_u32 s{S_T1}, s{S_T1}, 1\ns_cmp_gt_u32 s{S_T1}, {SPIN_L}\ns_cbranch_scc1 {l1}")
    a(f"s_sleep 1\ns_branch {l0}")
    a.label(l1)

def poll_flags(a, nfl, rdy, name, vt):
    l0, l1 = a.newlabel(name + "_pl"), a.newlabel(name + "_pok")
    a(f"v_lshlrev_b32 v{vt}, 2, v1")
    a(f"s_lshl_b32 s{S_T2}, s{S_RB}, 7\ns_add_u32 s{S_T2}, s{S_T2}, 0x{FLAG_OFF:x}\ns_mov_b32 s{S_T1}, 0")
    a(f"s_mov_b64 exec, 0x{(1 << nfl) - 1:x}")
    a.label(l0)
    a(f"buffer_load_dword v{vt+1}, v{vt}, s[{S_WS}:{S_WS+3}], s{S_T2} offen sc1")
    a("s_waitcnt vmcnt(0)")
    a(f"v_cmp_ne_u32 vcc, s{S_TAG}, v{vt+1}")
    a(f"s_cmp_eq_u64 vcc, 0\ns_cbranch_scc1 {l1}")
    a(f"s_add_u32 s{S_T1}, s{S_T1}, 1\ns_cmp_gt_u32 s{S_T1}, {SPIN_G}\ns_cbranch_scc0 {l0}")
    a.label(l1)
    a("s_mov_b64 exec, -1")
    a(f"v_mov_b32 v{vt}, {rdy}\nv_mov_b32 v{vt+1}, 1\nds_write_b32 v{vt}, v{vt+1}")

def gen_role(a, typ, role):
    P = f"R{typ}{role}"
    att = typ == 'att'
    isA = role == 'A'
    halo = att and not isA
    NT = 3 if isA else 2
    ACC = 64
    def acc(c, t): return ACC + (c * 2 + t) * 16
    HACC = 128
    FB = 160
    FSZ = 40 if isA else 44
    def fX(p, cs, t): return FB + p * FSZ + (cs * 2 + t) * 4
    def fW(p, cs, c): return FB + p * FSZ + 16 + (cs * NT + c) * 4
    def fH(p): return FB + p * FSZ + 32
    VW = [[2, 3], [4, 5]]
    VWH = [6, 7]
    VX = [8, 9, 10, 11]
    VXH = [12, 13]
    VDW = 14
    VD = [16, 17, 18, 19, 20]
    VDX = [21, 22]
    VDH = 23
    REC = 24
    VSTR = 56
    PREC = 44
    HREC = 48
    VST = 28
    VCS = 24
    VCSH = 32
    VSTH = 34
    T = 40
    vq = VQ()
    a.label(P)
    stamp(a, 0); stamp(a, 1, True)

    if not isA:
        a(f"v_lshrrev_b32 v{T}, 3, v1\nv_and_b32 v{T+1}, 7, v1\nv_lshrrev_b32 v{T+2}, 4, v1")
        if att:
            a(f"v_and_b32 v{T+3}, 1, v{T+2}\nv_lshlrev_b32 v{T+3}, 2, v{T+3}\nv_xor_b32 v{T+3}, v{T+3}, v{T+1}")
            a(f"v_lshlrev_b32 v{T+4}, 4, v{T+3}")
            a(f"v_mul_u32_u24 v{T+5}, 3072, v{T}\nv_add_u32 v{VD[0]}, v{T+5}, v{T+4}")
            a(f"v_mul_u32_u24 v{T+5}, 3584, v{T}\nv_add_u32 v{VD[1]}, v{T+5}, v{T+4}")
            a(f"v_xor_b32 v{T+4}, 32, v{T+4}\nv_add_u32 v{VD[2]}, v{T+5}, v{T+4}")
            a(f"s_mul_i32 s{S_SRC0}, s{S_B}, {8*3072}\ns_lshl_b32 s{S_T0}, s{S_CB}, 7\ns_add_u32 s{S_SRC0}, s{S_SRC0}, s{S_T0}")
            a(f"s_mul_i32 s{S_SRC1}, s{S_B}, {8*3584}\ns_add_u32 s{S_SRC1}, s{S_SRC1}, s{S_T0}")
            a(f"s_lshl_b32 s{S_WDST}, s{S_B}, 10")
        else:
            for m in range(5):
                a(f"v_add_u32 v{T+3}, {64*m}, v1")
                a(f"v_mul_u32_u24 v{T+4}, 3277, v{T+3}\nv_lshrrev_b32 v{T+4}, 16, v{T+4}")
                a(f"v_mul_u32_u24 v{T+5}, 20, v{T+4}\nv_sub_u32 v{T+5}, v{T+3}, v{T+5}")
                a(f"v_mul_u32_u24 v{T+4}, 3584, v{T+4}\nv_lshlrev_b32 v{T+5}, 4, v{T+5}\nv_add_u32 v{VD[m]}, v{T+4}, v{T+5}")
            a(f"s_and_b32 s{S_T1}, s{S_B}, 1")
            a(f"s_mul_i32 s{S_SRC0}, s{S_T1}, {16*3584}\ns_mul_i32 s{S_T0}, s{S_CB}, 320\ns_add_u32 s{S_SRC0}, s{S_SRC0}, s{S_T0}\ns_add_u32 s{S_SRC0}, s{S_SRC0}, 1024")
            a(f"s_mul_i32 s{S_WDST}, s{S_T1}, 5120\ns_lshr_b32 s{S_T0}, s{S_B}, 1\ns_mul_i32 s{S_T0}, s{S_T0}, {FFN_UOFF}\ns_add_u32 s{S_WDST}, s{S_WDST}, s{S_T0}")
        if halo:
            a(f"s_and_b32 s{S_T0}, s{S_B}, 1\ns_lshl_b32 s{S_T0}, s{S_T0}, 3")
            a(f"v_add_u32 v{T+3}, s{S_T0}, v{T}")
            a(f"v_and_b32 v{T+4}, 7, v{T+3}\nv_lshlrev_b32 v{T+4}, 1, v{T+4}\nv_lshrrev_b32 v{T+5}, 3, v{T+3}\nv_add_u32 v{T+4}, v{T+4}, v{T+5}")
            a(f"s_lshl_b32 s{S_T0}, s{S_RB}, 7\ns_sub_u32 s{S_T0}, s{S_T0}, 16\ns_max_i32 s{S_T0}, s{S_T0}, 0")
            a(f"v_add_u32 v{T+4}, s{S_T0}, v{T+4}\nv_lshlrev_b32 v{T+4}, 10, v{T+4}")
            a(f"v_bfe_u32 v{T+5}, v{T+3}, 1, 3\nv_xor_b32 v{T+5}, v{T+5}, v{T+1}\nv_lshlrev_b32 v{T+5}, 4, v{T+5}")
            a(f"v_add_u32 v{VDH}, v{T+4}, v{T+5}")
            a(f"s_and_b32 s{S_XDST}, s{S_B}, 1\ns_lshl_b32 s{S_XDST}, s{S_XDST}, 10\ns_add_u32 s{S_XDST}, s{S_XDST}, {XRING + 16384}")
        a(f"s_lshr_b32 s{S_T0}, s{S_RB}, 3\ns_xor_b32 s{S_T1}, s{S_T0}, 1")
        rowb = 3072 if att else 3584
        a(f"s_mul_i32 s{S_WB[0]}, s{S_T0}, {8*32*rowb}\ns_add_u32 s{S_WB[0]}, s{S_WB[0]}, s{S_SRC0}")
        a(f"s_mul_i32 s{S_WB[1]}, s{S_T1}, {8*32*rowb}\ns_add_u32 s{S_WB[1]}, s{S_WB[1]}, s{S_SRC0}")
        if att:
            a(f"s_mul_i32 s{S_GB[0]}, s{S_T0}, {8*32*3584}\ns_add_u32 s{S_GB[0]}, s{S_GB[0]}, s{S_SRC1}")
            a(f"s_mul_i32 s{S_GB[1]}, s{S_T1}, {8*32*3584}\ns_add_u32 s{S_GB[1]}, s{S_GB[1]}, s{S_SRC1}")
            a(f"s_lshl_b32 s{S_XB[0]}, s{S_T0}, 9\ns_lshl_b32 s{S_XB[1]}, s{S_T1}, 9")
    else:
        a(f"v_lshrrev_b32 v{T}, 3, v1\nv_and_b32 v{T+1}, 7, v1\nv_lshrrev_b32 v{T+2}, 4, v1")
        a(f"v_xor_b32 v{T+3}, v{T+1}, v{T+2}\nv_lshlrev_b32 v{T+3}, 4, v{T+3}\nv_lshlrev_b32 v{T+4}, 11, v{T}")
        a(f"v_add_u32 v{VDX[0]}, v{T+4}, v{T+3}\nv_xor_b32 v{VDX[1]}, 64, v{VDX[0]}")
        a(f"s_lshl_b32 s{S_XSRC}, s{S_RB}, 17\ns_lshr_b32 s{S_T0}, s{S_B}, 1\ns_lshl_b32 s{S_T0}, s{S_T0}, 16\ns_add_u32 s{S_XSRC}, s{S_XSRC}, s{S_T0}")
        a(f"s_and_b32 s{S_T0}, s{S_B}, 1\ns_lshl_b32 s{S_T0}, s{S_T0}, 10\ns_add_u32 s{S_XSRC}, s{S_XSRC}, s{S_T0}")
        a(f"s_lshl_b32 s{S_XDST}, s{S_B}, 12\ns_add_u32 s{S_XDST}, s{S_XDST}, {XRING}")
        a(f"s_lshr_b32 s{S_T0}, s{S_RB}, 3\ns_xor_b32 s{S_T1}, s{S_T0}, 1")
        a(f"s_lshl_b32 s{S_T0}, s{S_T0}, 9\ns_add_u32 s{S_XB[0]}, s{S_XSRC}, s{S_T0}\ns_lshl_b32 s{S_T1}, s{S_T1}, 9\ns_add_u32 s{S_XB[1]}, s{S_XSRC}, s{S_T1}")
        a(f"v_lshrrev_b32 v{T}, 5, v1\nv_lshlrev_b32 v{T}, 10, v{T}\nv_and_b32 v{T+1}, 31, v1\nv_lshlrev_b32 v{T+1}, 4, v{T+1}\nv_add_u32 v{T}, v{T}, v{T+1}")
        a(f"s_lshl_b32 s{S_T2}, s{S_RB}, 7\ns_lshl_b32 s{S_T0}, s{S_K16}, 3\ns_add_u32 s{S_T2}, s{S_T2}, s{S_T0}\ns_lshl_b32 s{S_T0}, s{S_B}, 1\ns_add_u32 s{S_T2}, s{S_T2}, s{S_T0}")
        a(f"s_lshl_b32 s{S_T3}, s{S_T2}, 10")
        if att:
            a(f"v_lshrrev_b32 v{T+2}, 4, v1\ns_lshl_b32 s{S_T0}, s{S_B}, 2\nv_add_u32 v{T+2}, s{S_T0}, v{T+2}")
            a(f"v_and_b32 v{T+3}, 7, v{T+2}\nv_lshlrev_b32 v{T+3}, 1, v{T+3}\nv_lshrrev_b32 v{T+4}, 3, v{T+2}\nv_add_u32 v{T+3}, v{T+3}, v{T+4}")
            a(f"s_lshl_b32 s{S_T0}, s{S_RB}, 7\ns_sub_u32 s{S_T0}, s{S_T0}, 16\ns_max_i32 s{S_T0}, s{S_T0}, 0")
            a(f"v_add_u32 v{T+3}, s{S_T0}, v{T+3}\nv_lshlrev_b32 v{T+3}, 10, v{T+3}")
            a(f"v_and_b32 v{T+4}, 15, v1\nv_lshlrev_b32 v{T+4}, 4, v{T+4}\nv_add_u32 v{T+3}, v{T+3}, v{T+4}")

    a("s_waitcnt lgkmcnt(0)")
    srd(a, S_X, 4, 2048 * 1024)
    srd(a, S_WS, 12, WS_SIZE)
    if not isA:
        if att:
            srd(a, S_W0, 6, 512 * 3072)
            srd(a, S_WG, 8, 512 * 3584)
            srd(a, S_WU, 10, 512 * 3584)
        else:
            a(f"s_cmp_lt_u32 s{S_B}, 2")
            a(f"s_cselect_b32 s{S_W0}, s8, s10\ns_cselect_b32 s{S_W0+1}, s9, s11")
            a(f"s_mov_b32 s{S_W0+2}, 0x{512*3584:x}\ns_mov_b32 s{S_W0+3}, 0x00020000")

    def dma_w(s):
        L = []
        dst = (s % 5) * WSLOT
        h, so_ = s >> 3, s & 7
        if att:
            for p in range(5):
                srdn = S_W0 if p < 3 else (S_WG if p == 3 else S_WU)
                vo = VD[0] if p < 3 else VD[p - 2]
                g = [f"s_add_u32 m0, s{S_WDST}, {dst + p*4096}"]
                if p < 3: c, base = so_ * 32 * 3072 + p * 1024, S_WB[h]
                else: c, base = so_ * 32 * 3584, S_GB[h]
                if p == 4: so = S_T1
                elif c == 0: so = base
                else:
                    so = S_T1 if p == 3 else S_T0
                    g.append(f"s_add_u32 s{so}, s{base}, {c}")
                if p == 4 and c == 0: so = base
                g.append(f"buffer_load_dwordx4 v{vo}, s[{srdn}:{srdn+3}], s{so} offen lds")
                g.append(lambda s=s: vq.push(('W', s)))
                L.append(g)
        else:
            c = so_ * 32 * 3584
            for m in range(5):
                g = [f"s_add_u32 m0, s{S_WDST}, {dst + m*1024}"]
                if m == 0 and c: g.append(f"s_add_u32 s{S_T1}, s{S_WB[h]}, {c}")
                so = S_T1 if c else S_WB[h]
                g += [f"buffer_load_dwordx4 v{VD[m]}, s[{S_W0}:{S_W0+3}], s{so} offen lds",
                      lambda s=s: vq.push(('W', s))]
                L.append(g)
        return L

    def dma_x(u):
        L = []
        dst = (u % 3) * XSLOT
        for i in range(4):
            g = [f"s_add_u32 m0, s{S_XDST}, {dst + i*1024}"]
            c = (u & 3) * 128 + i * 16384
            if c:
                g.append(f"s_add_u32 s{S_T0}, s{S_XB[u >> 2]}, {c}"); so = S_T0
            else:
                so = S_XB[u >> 2]
            g.append(f"buffer_load_dwordx4 v{VDX[i&1]}, s[{S_X}:{S_X+3}], s{so} offen lds")
            g.append(lambda u=u: vq.push(('X', u)))
            L.append(g)
        return L

    def dma_xh(u):
        dst = (u % 3) * XSLOT
        g = [f"s_add_u32 m0, s{S_XDST}, {dst}"]
        c = (u & 3) * 128
        if c:
            g.append(f"s_add_u32 s{S_T0}, s{S_XB[u >> 2]}, {c}"); so = S_T0
        else:
            so = S_XB[u >> 2]
        g += [f"buffer_load_dwordx4 v{VDH}, s[{S_X}:{S_X+3}], s{so} offen lds",
              lambda u=u: vq.push(('X', u))]
        return [g]

    def emit_groups(L):
        for g in L:
            for s in g:
                if callable(s): s()
                else: a(s)

    def wrap(L):
        return [(lambda g=g: emit_groups([g])) for g in L]

    if not isA:
        emit_groups(dma_w(0))
        if halo: emit_groups(dma_xh(0))
    else:
        emit_groups(dma_x(0))
    a(f"s_lshl_b32 s{S_T0}, s{S_RB}, 7\ns_add_u32 s{S_T0}, s{S_T0}, 0x{EP_OFF:x}\ns_lshl_b32 s{S_T1}, s{S_K16}, 7\ns_add_u32 s{S_T1}, s{S_T1}, 0x{EPC_OFF:x}")
    a(f"buffer_load_dword v62, off, s[{S_WS}:{S_WS+3}], s{S_T0} sc1"); vq.push('EP')
    a(f"buffer_load_dword v63, off, s[{S_WS}:{S_WS+3}], s{S_T1} sc1"); vq.push('EP')
    if not isA:
        emit_groups(dma_w(1))
        emit_groups(dma_w(2))
        if halo: emit_groups(dma_xh(1))
        emit_groups(dma_w(3)); emit_groups(dma_w(4))
        if halo: emit_groups(dma_xh(2))
    else:
        SS = 160
        a(f"buffer_load_dwordx4 v[{SS}:{SS+3}], v{T}, s[{S_X}:{S_X+3}], s{S_T3} offen")
        a(f"buffer_load_dwordx4 v[{SS+4}:{SS+7}], v{T}, s[{S_X}:{S_X+3}], s{S_T3} offen offset:512")
        vq.push('ST'); vq.push('ST')
        if att:
            for i in range(4):
                a(f"buffer_load_dwordx4 v[{SS+8+4*i}:{SS+8+4*i+3}], v{T+3}, s[{S_X}:{S_X+3}], 0 offen offset:{256*i}")
                vq.push('SH')
        emit_groups(dma_x(1)); emit_groups(dma_x(2))
        a(f"s_lshl_b32 s{S_CX}, s{S_T2}, 4\ns_add_u32 s{S_CX}, s{S_CX}, 0x{STATS_OFF:x}")

    srd(a, S_WO, 14, 512 * 1024)
    a(f"s_mov_b32 s{S_WD}, s{S_WD+4}\ns_mov_b32 s{S_WD+1}, s{S_WD+5}\ns_mov_b32 s{S_WD+2}, 0x{1792*1024:x}\ns_mov_b32 s{S_WD+3}, 0x00020000")
    a(f"s_mov_b32 s{S_OUT}, s{S_OUT+2}\ns_mov_b32 s{S_OUT+1}, s{S_OUT+3}\ns_mov_b32 s{S_OUT+2}, 0x{2048*1024:x}\ns_mov_b32 s{S_OUT+3}, 0x00020000")

    a(f"v_lshrrev_b32 v{T+6}, 4, v1")
    g_, r_, c4_, gh_, gl_, kr_, sw_ = T + 6, T + 7, T + 8, T + 9, T + 10, T + 11, T + 12
    a(f"v_bfe_u32 v{r_}, v1, 2, 2\nv_and_b32 v{c4_}, 3, v1\nv_lshrrev_b32 v{gh_}, 1, v{g_}\nv_and_b32 v{gl_}, 1, v{g_}")
    a(f"v_lshlrev_b32 v{kr_}, 3, v{gh_}\nv_add_u32 v{kr_}, v{kr_}, v{r_}\nv_lshrrev_b32 v{sw_}, 1, v{r_}")
    U = T + 13
    if att:
        a(f"v_xor_b32 v{U}, s{S_IX}, v{sw_}\nv_lshlrev_b32 v{U}, 6, v{U}")
        a(f"v_lshlrev_b32 v{U+1}, 7, v{kr_}\nv_add_u32 v{U+1}, v{U+1}, v{U}")
        a(f"v_lshlrev_b32 v{U+2}, 3, v{c4_}\nv_add_u32 v{U+1}, v{U+1}, v{U+2}")
        if isA:
            a(f"v_lshlrev_b32 v{U+2}, 5, v{gl_}\nv_add_u32 v{VW[0][0]}, v{U+1}, v{U+2}")
        else:
            a(f"v_mul_u32_u24 v{U+2}, {4096+32}, v{gl_}")
            a(f"v_add_u32 v{VW[0][0]}, v{U+1}, v{U+2}\nv_add_u32 v{VW[0][0]}, {3*4096}, v{VW[0][0]}")
            a(f"v_xor_b32 v{VW[1][0]}, 32, v{VW[0][0]}")
            a(f"v_add_u32 v{VW[1][1]}, {3*WSLOT}, v{VW[1][0]}")
            a(f"v_lshlrev_b32 v{U+2}, 3, v{g_}\nv_add_u32 v{U+2}, v{U+2}, v{r_}\nv_lshlrev_b32 v{U+2}, 7, v{U+2}")
            a(f"s_lshr_b32 s{S_T0}, s{S_B}, 1\ns_and_b32 s{S_T1}, s{S_B}, 1\ns_lshl_b32 s{S_T1}, s{S_T1}, 5\ns_add_u32 s{S_T1}, s{S_T1}, 4096")
            a(f"v_xor_b32 v{U+3}, s{S_T0}, v{sw_}\nv_lshlrev_b32 v{U+3}, 6, v{U+3}")
            a(f"v_add_u32 v{U+2}, v{U+2}, v{U+3}\nv_lshlrev_b32 v{U+3}, 3, v{c4_}\nv_add_u32 v{U+2}, v{U+2}, v{U+3}")
            a(f"v_add_u32 v{VWH[0]}, s{S_T1}, v{U+2}\nv_add_u32 v{VWH[1]}, {3*WSLOT}, v{VWH[0]}")
    else:
        a(f"v_mul_u32_u24 v{U}, {FFN_UOFF}, v{gl_}\nv_mul_u32_u24 v{U+1}, 320, v{kr_}\nv_add_u32 v{U}, v{U}, v{U+1}")
        a(f"v_lshlrev_b32 v{U+2}, 3, v{c4_}\nv_add_u32 v{U}, v{U}, v{U+2}")
        if isA:
            a(f"s_mul_i32 s{S_T0}, s{S_IX}, 96")
        else:
            a(f"s_lshl_b32 s{S_T0}, s{S_IX}, 6\ns_add_u32 s{S_T0}, s{S_T0}, 192")
        a(f"v_add_u32 v{VW[0][0]}, s{S_T0}, v{U}")
    a(f"v_add_u32 v{VW[0][1]}, {3*WSLOT}, v{VW[0][0]}")
    a(f"v_and_b32 v{U}, 31, v1\nv_lshrrev_b32 v{U+1}, 5, v1\nv_bfe_u32 v{U+2}, v1, 1, 3")
    a(f"v_xor_b32 v{U+2}, v{U+2}, v{U+1}\nv_lshlrev_b32 v{U+2}, 4, v{U+2}")
    a(f"v_lshlrev_b32 v{U}, 7, v{U}\nv_add_u32 v{U}, v{U}, v{U+2}")
    a(f"s_lshl_b32 s{S_T0}, s{S_RP}, 13\ns_add_u32 s{S_T0}, s{S_T0}, {XRING}")
    a(f"v_add_u32 v{VX[0]}, s{S_T0}, v{U}")
    for cu in range(1, 4):
        a(f"v_xor_b32 v{VX[cu]}, {cu*32}, v{VX[0]}")
    if halo:
        a(f"v_and_b32 v{U}, 15, v1\nv_lshrrev_b32 v{U+1}, 4, v1\nv_bfe_u32 v{U+2}, v1, 1, 3")
        a(f"v_xor_b32 v{U+2}, v{U+2}, v{U+1}\nv_lshlrev_b32 v{U+2}, 4, v{U+2}")
        a(f"v_lshlrev_b32 v{U}, 7, v{U}\nv_add_u32 v{U}, v{U}, v{U+2}")
        a(f"v_add_u32 v{VXH[0]}, {XRING + 16384}, v{U}\nv_xor_b32 v{VXH[1]}, 64, v{VXH[0]}")
    a(f"v_lshrrev_b32 v{U}, 3, v1\nv_and_b32 v{U+1}, 3, v{U}\nv_lshrrev_b32 v{U+2}, 2, v{U}\nv_lshlrev_b32 v{U+2}, 3, v{U+2}\nv_add_u32 v{U+1}, v{U+1}, v{U+2}")
    a(f"v_lshlrev_b32 v{U+1}, 10, v{U+1}")
    a(f"v_bfe_u32 v{U+2}, v{U}, 1, 1\nv_lshlrev_b32 v{U+2}, 2, v{U+2}\nv_and_b32 v{U+3}, 7, v1\nv_xor_b32 v{U+2}, v{U+2}, v{U+3}\nv_lshlrev_b32 v{U+2}, 4, v{U+2}")
    a(f"v_add_u32 v{VDW}, v{U+1}, v{U+2}")
    a(f"s_and_b32 s{S_T0}, s2, 7\ns_lshr_b32 s{S_T0}, s{S_T0}, 1\ns_and_b32 s{S_T1}, s{S_T0}, 1\ns_lshl_b32 s{S_RPP}, s{S_RB}, 1\ns_add_u32 s{S_RPP}, s{S_RPP}, s{S_T1}")
    a(f"s_lshr_b32 s{S_T0}, s{S_T0}, 1\ns_lshl_b32 s{S_T0}, s{S_T0}, 2\ns_add_u32 s{S_CT}, s{S_T0}, s{S_SEL}")
    a(f"s_lshl_b32 s{S_W2B}, s{S_B}, 14\ns_lshl_b32 s{S_T0}, s{S_CT}, 7\ns_add_u32 s{S_W2B}, s{S_W2B}, s{S_T0}")
    if not isA: a(f"s_add_u32 s{S_W2B}, s{S_W2B}, {40*16384}")
    a(f"s_lshl_b32 s{S_W2D}, s{S_WAVE}, 11")
    a(f"s_mul_i32 s{S_ACTB}, s{S_RPP}, {2*ACT_T}\ns_lshl_b32 s{S_T0}, s{S_B}, 10\ns_add_u32 s{S_ACTB}, s{S_ACTB}, s{S_T0}")
    a(f"s_and_b32 s{S_CSDO}, s{S_RB}, 7\ns_cmp_eq_u32 s{S_RP}, {0 if isA else 1}\ns_cselect_b32 s{S_CSDO}, s{S_CSDO}, 99")

    def w2_dma(i, blk):
        if isA and i >= 10: srdn, ii = S_WO, i - 10
        else: srdn, ii = S_WD, i
        L = []
        for n in range(2):
            L.append([f"s_add_u32 m0, s{S_W2D}, {BLK[blk] + n*1024}",
                      f"s_add_u32 s{S_T0}, s{S_W2B}, {ii*65536 + n*4096}",
                      f"buffer_load_dwordx4 v{VDW}, s[{srdn}:{srdn+3}], s{S_T0} offen lds",
                      lambda i=i: vq.push(('D', i))])
        return L

    if isA:
        l_no = a.newlabel(P + "_noinit")
        a(f"s_cmp_lg_u32 s{S_WAVE}, 0\ns_cbranch_scc1 {l_no}")
        a(f"v_mov_b32 v{U}, {MISC}")
        a(f"v_mov_b32 v{REC}, 0\nv_mov_b32 v{REC+1}, 0\nv_mov_b32 v{REC+2}, 0\nv_mov_b32 v{REC+3}, 0")
        a(f"ds_write_b128 v{U}, v[{REC}:{REC+3}]")
        a.label(l_no)
        n = vq.n_after(['EP', 'ST'])
        a(f"s_waitcnt vmcnt({n})"); vq.done(n)
        a(f"v_readfirstlane_b32 s{S_TAG}, v62\nv_readfirstlane_b32 s{S_TAGC}, v63")
        a(f"s_mul_i32 s{S_TAG}, s{S_TAG}, 0x{LCG_A:x}\ns_add_u32 s{S_TAG}, s{S_TAG}, 0x{LCG_C:x}")
        a(f"s_mul_i32 s{S_TAGC}, s{S_TAGC}, 0x{LCG_A:x}\ns_add_u32 s{S_TAGC}, s{S_TAGC}, 0x{LCG_C:x}")
        RES = 200
        row_stats(a, 160, 8, 208, RES, 32)
        a(f"v_mov_b32 v{RES+2}, s{S_TAG}\nv_mov_b32 v{RES+3}, s{S_TAG}")
        a(f"v_lshrrev_b32 v{U}, 5, v1\nv_lshlrev_b32 v{U}, 4, v{U}")
        a("s_mov_b32 exec_lo, 1\ns_mov_b32 exec_hi, 1")
        a(f"buffer_store_dwordx4 v[{RES}:{RES+3}], v{U}, s[{S_WS}:{S_WS+3}], s{S_CX} offen sc1"); vq.push('SS')
        a("s_mov_b64 exec, -1")
        if att:
            n = vq.n_after(['SH'])
            a(f"s_waitcnt vmcnt({n})"); vq.done(n)
            RES2 = 204
            row_stats(a, 168, 16, 208, RES2, 16)
            a(f"v_lshrrev_b32 v{U}, 4, v1\nv_lshlrev_b32 v{U}, 3, v{U}\ns_lshl_b32 s{S_T0}, s{S_B}, 5\ns_add_u32 s{S_T0}, s{S_T0}, {HST}\nv_add_u32 v{U}, s{S_T0}, v{U}")
            a("s_mov_b32 exec_lo, 0x00010001\ns_mov_b32 exec_hi, 0x00010001")
            a(f"ds_write_b64 v{U}, v[{RES2}:{RES2+1}]")
            a("s_mov_b64 exec, -1")
    stamp(a, 2)
    if not isA:
        n = vq.n_after([('W', 0), ('X', 0), 'EP'])
        a(f"s_waitcnt vmcnt({n})"); vq.done(n)
        a(f"v_readfirstlane_b32 s{S_TAG}, v62\nv_readfirstlane_b32 s{S_TAGC}, v63")
        a(f"s_mul_i32 s{S_TAG}, s{S_TAG}, 0x{LCG_A:x}\ns_add_u32 s{S_TAG}, s{S_TAG}, 0x{LCG_C:x}")
        a(f"s_mul_i32 s{S_TAGC}, s{S_TAGC}, 0x{LCG_A:x}\ns_add_u32 s{S_TAGC}, s{S_TAGC}, 0x{LCG_C:x}")
    a("s_waitcnt lgkmcnt(0)\ns_barrier")
    stamp(a, 3)

    def reads(s):
        p = s & 1
        slot = s % 5
        hi = 1 if slot >= 3 else 0
        wo = (slot - 3 * hi) * WSLOT
        xo = ((s >> 1) % 3) * XSLOT
        L = []
        for cs in range(2):
            cu = 2 * (s & 1) + cs
            for t in range(2):
                L.append(f"ds_read_b128 v[{fX(p,cs,t)}:{fX(p,cs,t)+3}], v{VX[cu]} offset:{xo + t*4096}")
            for c in range(NT):
                for h in range(2):
                    if att and isA: va, off = VW[0][hi], c * 4096 + cs * 2048 + h * 512
                    elif att: va, off = VW[c][hi], cs * 2048 + h * 512
                    else: va, off = VW[0][hi], c * 32 + cs * 5120 + h * 1280
                    L.append(f"ds_read_b64_tr_b16 v[{fW(p,cs,c)+2*h}:{fW(p,cs,c)+2*h+1}], v{va} offset:{wo + off}")
        if halo:
            for m in range(2):
                for h in range(2):
                    L.append(f"ds_read_b64_tr_b16 v[{fH(p)+4*m+2*h}:{fH(p)+4*m+2*h+1}], v{VWH[hi]} offset:{wo + m*4096 + h*512}")
            L.append(f"ds_read_b128 v[{fH(p)+8}:{fH(p)+11}], v{VXH[s&1]} offset:{xo}")
        return L

    def mfmas(p, cs, first=False):
        L = []
        for c in range(NT):
            for t in range(2):
                cin = "0" if first else f"v[{acc(c,t)}:{acc(c,t)+15}]"
                L.append(f"v_mfma_f32_32x32x16_bf16 v[{acc(c,t)}:{acc(c,t)+15}], v[{fW(p,cs,c)}:{fW(p,cs,c)+3}], v[{fX(p,cs,t)}:{fX(p,cs,t)+3}], {cin}")
        return L

    def halo_mfmas(p, first=False):
        L = []
        for m in range(2):
            cin = "0" if first else f"v[{HACC+4*m}:{HACC+4*m+3}]"
            L.append(f"v_mfma_f32_16x16x32_bf16 v[{HACC+4*m}:{HACC+4*m+3}], v[{fH(p)+4*m}:{fH(p)+4*m+3}], v[{fH(p)+8}:{fH(p)+11}], {cin}")
        return L

    ROLEIX = (0 if isA else 2)
    def colsum_block(s):
        lab = a.newlabel(P + "_nocs")
        p = s & 1
        a(f"s_cmp_lg_u32 s{S_CSDO}, {s}\ns_cbranch_scc1 {lab}")
        SELV, D = 40, 44
        a(f"v_bfe_u32 v{SELV}, v1, 4, 1\nv_and_b32 v{SELV+1}, 1, v1\nv_cmp_eq_u32 vcc, v{SELV}, v{SELV+1}")
        a(f"v_mov_b32 v{SELV+2}, 0x3f803f80\nv_cndmask_b32 v{SELV}, 0, v{SELV+2}, vcc")
        a(f"v_mov_b32 v{SELV+1}, v{SELV}\nv_mov_b32 v{SELV+2}, v{SELV}\nv_mov_b32 v{SELV+3}, v{SELV}")
        for cs in range(2):
            for c in range(NT):
                cin = "0" if cs == 0 else f"v[{D+4*c}:{D+4*c+3}]"
                a(f"v_mfma_f32_16x16x32_bf16 v[{D+4*c}:{D+4*c+3}], v[{SELV}:{SELV+3}], v[{fW(p,cs,c)}:{fW(p,cs,c)+3}], {cin}")
        a(f"v_bfe_u32 v{REC+4}, v1, 4, 1\nv_cmp_eq_u32 vcc, 1, v{REC+4}")
        for c in range(NT):
            a(f"v_cndmask_b32 v{REC+c}, v{D+4*c}, v{D+4*c+1}, vcc")
        for c in range(NT, 4):
            a(f"v_mov_b32 v{REC+c}, s{S_TAGC}")
        a(f"s_lshl_b32 s{S_T0}, s{S_K16}, 2\ns_add_u32 s{S_T0}, s{S_T0}, s{S_IX}\ns_add_u32 s{S_T0}, s{S_T0}, {ROLEIX}\ns_lshl_b32 s{S_T0}, s{S_T0}, 4\ns_add_u32 s{S_T0}, s{S_T0}, s{S_RB}")
        a(f"s_lshl_b32 s{S_T0}, s{S_T0}, 9\ns_add_u32 s{S_T0}, s{S_T0}, 0x{CSP_OFF:x}")
        a(f"v_lshlrev_b32 v{REC+4}, 4, v1")
        a("s_mov_b32 exec_hi, 0")
        a(f"buffer_store_dwordx4 v[{REC}:{REC+3}], v{REC+4}, s[{S_WS}:{S_WS+3}], s{S_T0} offen sc1")
        a("s_mov_b32 exec_hi, -1")
        a.label(lab)

    def rec_addr():
        return [[f"v_and_b32 v15, 31, v1", f"v_lshlrev_b32 v15, 4, v15", f"v_lshrrev_b32 v60, 5, v1", f"v_lshlrev_b32 v61, 11, v60",
                 f"v_add_u32 v15, v15, v61"],
                [f"s_lshl_b32 s12, s{S_K16}, 2", f"s_add_u32 s12, s12, s{S_IX}", f"s_add_u32 s12, s12, {ROLEIX}",
                 f"s_lshl_b32 s12, s12, 1", f"s_add_u32 s12, s12, s{S_RP}",
                 f"s_lshl_b32 s12, s12, 12", f"s_add_u32 s12, s12, 0x{CSP_OFF:x}"],
                [f"v_and_b32 v61, 31, v1", f"v_lshlrev_b32 v61, 5, v61", f"v_lshlrev_b32 v60, 4, v60", f"v_add_u32 v60, v60, v61"],
                [f"s_lshl_b32 s14, s{S_RB}, 11", f"s_lshl_b32 s13, s{S_RP}, 10", f"s_add_u32 s14, s14, s13",
                 f"s_add_u32 s14, s14, 0x{STATS_OFF:x}"]]

    def rec_loads():
        L = []
        for i in range(4):
            L.append([f"buffer_load_dwordx4 v[{REC+4*i}:{REC+4*i+3}], v15, s[{S_WS}:{S_WS+3}], s12 offen offset:{i*512} sc1",
                      lambda: vq.push('R')])
        L.append([f"buffer_load_dwordx4 v[{VSTR}:{VSTR+3}], v60, s[{S_WS}:{S_WS+3}], s14 offen sc1", lambda: vq.push('R')])
        return L

    def rec_check(ok_label, retry_label):
        a(f"v_cmp_ne_u32 s[{S_P0}:{S_P0+1}], s{S_TAGC}, v{REC+3}")
        for i in range(1, 4):
            a(f"v_cmp_ne_u32 vcc, s{S_TAGC}, v{REC+4*i+3}\ns_or_b64 s[{S_P0}:{S_P0+1}], s[{S_P0}:{S_P0+1}], vcc")
        a(f"v_cmp_ne_u32 vcc, s{S_TAG}, v{VSTR+3}\ns_or_b64 s[{S_P0}:{S_P0+1}], s[{S_P0}:{S_P0+1}], vcc")
        a(f"s_cmp_lg_u64 s[{S_P0}:{S_P0+1}], 0\ns_cbranch_scc1 {retry_label}")
        a.label(ok_label)

    L_OK, L_RETRY = P + "_recok", P + "_retry"

    def rec_sum():
        L = []
        g = []
        for c in range(NT):
            g += [f"v_add_f32 v{REC+c}, v{REC+c}, v{REC+4+c}", f"v_add_f32 v{REC+8+c}, v{REC+8+c}, v{REC+12+c}"]
        L.append(g[:4]); L.append(g[4:] if g[4:] else [])
        L.append([f"v_add_f32 v{REC+c}, v{REC+c}, v{REC+8+c}" for c in range(NT)])
        L.append([f"v_mov_b32 v{REC+4+c}, v{REC+c}" for c in range(NT)] +
                 [f"s_add_u32 s{S_T2}, s{S_IX}, {ROLEIX}", f"s_lshl_b32 s{S_T2}, s{S_T2}, 10", f"s_lshl_b32 s{S_T3}, s{S_RP}, 9",
                  f"s_add_u32 s{S_T3}, s{S_T3}, s{S_T2}", f"s_add_u32 s{S_T3}, s{S_T3}, {XCH}"])
        L.append([f"v_permlane32_swap_b32 v{REC+c}, v{REC+4+c}" for c in range(NT)] +
                 [f"v_and_b32 v{T}, 31, v1", f"v_lshlrev_b32 v{T}, 4, v{T}"])
        L.append([f"v_add_f32 v{REC+c}, v{REC+c}, v{REC+4+c}" for c in range(NT)] + [f"v_add_u32 v{T+1}, s{S_T3}, v{T}"])
        L.append([f"ds_write_b128 v{T+1}, v[{REC}:{REC+3}]",
                  f"v_lshrrev_b32 v{T+2}, 5, v1", f"v_lshlrev_b32 v{T+2}, 9, v{T+2}", f"v_add_u32 v{T+2}, v{T+2}, v{T}",
                  f"s_add_u32 s{S_T2}, s{S_T2}, {XCH}", f"v_add_u32 v{T+2}, s{S_T2}, v{T+2}"])
        L.append([f"v_mov_b32 v{VST}, v{VSTR}", f"v_mov_b32 v{VST+1}, v{VSTR+1}", f"v_mov_b32 v{VST+2}, v{VSTR}", f"v_mov_b32 v{VST+3}, v{VSTR+1}"])
        L.append([f"v_permlane32_swap_b32 v{VST}, v{VST+2}", f"v_permlane32_swap_b32 v{VST+1}, v{VST+3}"])
        return [g for g in L if g]

    def xch_reads():
        L = [[f"ds_read_b128 v[{VCS}:{VCS+3}], v{T+2}"]]
        if halo:
            L.append([f"v_and_b32 v{T}, 15, v1", f"v_lshlrev_b32 v{T}, 4, v{T}", f"v_bfe_u32 v{T+1}, v1, 4, 1", f"v_lshlrev_b32 v{T+1}, 9, v{T+1}",
                      f"v_add_u32 v{T}, v{T}, v{T+1}"])
            L.append([f"s_lshr_b32 s{S_T2}, s{S_B}, 1", f"s_lshl_b32 s{S_T2}, s{S_T2}, 10", f"s_and_b32 s{S_T3}, s{S_B}, 1", f"s_lshl_b32 s{S_T3}, s{S_T3}, 8",
                      f"s_add_u32 s{S_T2}, s{S_T2}, s{S_T3}", f"s_add_u32 s{S_T2}, s{S_T2}, {XCH}", f"v_add_u32 v{T}, s{S_T2}, v{T}"])
            L.append([f"ds_read_b128 v[{HREC}:{HREC+3}], v{T}"])
            L.append([f"v_and_b32 v{T+1}, 15, v1", f"v_lshlrev_b32 v{T+1}, 3, v{T+1}", f"v_add_u32 v{T+1}, {HST}, v{T+1}",
                      f"ds_read_b64 v[{VSTH}:{VSTH+1}], v{T+1}"])
        return L

    def fold_prep():
        L = []
        for t in range(2):
            L.append(fold_b_frag(a, fX(0, 0, t), VST + 2 * t, T, T + 1))
        for c in range(NT):
            L.append(fold_a_frag(a, fW(0, 0, c), VCS + c, T))
        if halo:
            L.append([f"v_mul_f32 v{VCSH}, 0.5, v{HREC+1}", f"v_mul_f32 v{VCSH+1}, 0.5, v{HREC+2}"])
            L.append(fold_b_frag(a, fH(0) + 8, VSTH, T, T + 1))
            for m in range(2):
                L.append(fold_a_frag(a, fH(0) + 4 * m, VCSH + m, T))
        return L

    for s_ in reads(0): a(s_)
    if not isA:
        n = vq.n_after([('W', 1)])
        a(f"s_waitcnt vmcnt({n}) lgkmcnt(0)"); vq.done(n)
    else:
        a("s_waitcnt lgkmcnt(0)")
    a("s_barrier")

    def flat(L):
        return wrap(L)

    for s in range(16):
        p = s & 1
        if PROF2: a("s_memtime s[100:101]")
        mf = mfmas(p, 0, first=(s == 0)) + mfmas(p, 1)
        if halo:
            hm = halo_mfmas(p, first=(s == 0))
            mf = mf[:4] + hm[:1] + mf[4:] + hm[1:]
            mf = mf[:-2] + [mf[-1], mf[-2]]
        dm = []
        u = (s + 1) // 2 + 2
        if isA:
            if (s & 1) and u <= 7: dm += dma_x(u)
        else:
            if s + 5 <= 15: dm += dma_w(s + 5)
            if halo and (s & 1) and u <= 7: dm += dma_xh(u)
        for i in range(7):
            if BLK_STEP[i] == s: dm += w2_dma(i, i)
        if s == 10: dm += rec_loads()[:3]
        if s == 11: dm += rec_loads()[3:]
        rd = [[x] for x in reads(s + 1)] if s < 15 else []
        fill = []
        if s == 9: fill += rec_addr()
        if s == 13:
            def chk():
                n = vq.n_after(['R'])
                if n is not None:
                    a(f"s_waitcnt vmcnt({n})"); vq.done(n)
                rec_check(L_OK, L_RETRY)
            fill.append(chk)
            fill += rec_sum()
        if s == 14: fill += xch_reads()
        if s == 15: fill += fold_prep()
        if isA:
            interleave(a, mf, rd + fill)
            emit_groups(dm)
            if s < 8: colsum_block(s)
        else:
            if s < 8: colsum_block(s)
            if s == 14:
                emit_groups(fill); fill = []
            while dm or rd:
                if dm: emit_groups([dm.pop(0)])
                for _ in range(2):
                    if rd: emit_groups([rd.pop(0)])
            interleave(a, mf, fill)
        if s == 14 and isA:
            lab = a.newlabel(P + "_nobump")
            a(f"s_or_b32 s{S_T0}, s{S_RB}, s{S_WAVE}\ns_cmp_lg_u32 s{S_T0}, 0\ns_cbranch_scc1 {lab}")
            a(f"s_lshl_b32 s{S_T0}, s{S_K16}, 7\ns_add_u32 s{S_T0}, s{S_T0}, 0x{EPC_OFF:x}\nv_mov_b32 v15, s{S_TAGC}")
            a("s_mov_b64 exec, 1")
            a(f"buffer_store_dword v15, off, s[{S_WS}:{S_WS+3}], s{S_T0} sc1")
            a("s_mov_b64 exec, -1")
            a.label(lab)
        if s < 15:
            w = "lgkmcnt(0)"
            n = vq.n_after([('W', s + 2), ('X', (s + 2) >> 1)])
            if n is not None:
                w = f"vmcnt({n}) lgkmcnt(0)"; vq.done(n)
            if PROF2:
                a("s_memtime s[98:99]")
                a(f"s_waitcnt {w}")
                a(f"v_writelane_b32 v255, s100, {s}\nv_writelane_b32 v255, s98, {16+s}")
                a("s_barrier")
            else:
                a(f"s_waitcnt {w}\ns_barrier")
    if PROF2:
        a("s_waitcnt lgkmcnt(0)\nv_writelane_b32 v255, s100, 15")
        a(f"v_lshlrev_b32 v254, 2, v1")
        a(f"s_lshl_b32 s{S_T0}, s2, 3\ns_add_u32 s{S_T0}, s{S_T0}, s{S_WAVE}\ns_lshl_b32 s{S_T0}, s{S_T0}, 8\ns_add_u32 s{S_T0}, s{S_T0}, 0x{PROF2_OFF:x}")
        a(f"buffer_store_dword v255, v254, s[{S_WS}:{S_WS+3}], s{S_T0} offen"); vq.push('PS')
    stamp(a, 4)
    for s_ in mfmas(0, 0): a(s_)
    if halo:
        for s_ in halo_mfmas(0): a(s_)

    nst = 0
    def gu_epilogue(tiles, chunk_sreg):
        nonlocal nst
        a(f"v_mul_f32 v{T}, v{VST+1}, v{VST+1}\nv_mul_f32 v{T+2}, v{VST+3}, v{VST+3}")
        a(f"v_lshlrev_b32 v{T+4}, 4, v1")
        for c in tiles:
            for t in range(2):
                b = acc(c, t)
                for r in range(0, 8, 2):
                    a(f"v_pk_mul_f32 v[{b+r}:{b+r+1}], v[{b+r}:{b+r+1}], v[{b+8+r}:{b+8+r+1}]")
                for r in range(0, 8, 2):
                    a(f"v_pk_mul_f32 v[{b+r}:{b+r+1}], v[{b+r}:{b+r+1}], v[{T+2*t}:{T+2*t+1}] op_sel_hi:[1,0]")
                for i in range(4):
                    a(f"v_cvt_pk_bf16_f32 v{b+8+i}, v{b+2*i}, v{b+2*i+1}")
                a(f"s_add_u32 s{S_T0}, s{chunk_sreg}, {c*1024 + t*ACT_T}")
                a(f"buffer_store_dwordx4 v[{b+8}:{b+11}], v{T+4}, s[{S_WS}:{S_WS+3}], s{S_T0} offen sc1")
                vq.push('H'); nst += 1

    a(f"s_lshl_b32 s{S_T1}, s{S_RB}, 2\ns_lshl_b32 s{S_T2}, s{S_RP}, 1\ns_add_u32 s{S_T1}, s{S_T1}, s{S_T2}\ns_mul_i32 s{S_T1}, s{S_T1}, {ACT_T}")
    if not att:
        a(f"s_mul_i32 s{S_T2}, s{S_CB}, 10\ns_add_u32 s{S_T2}, s{S_T2}, 64")
        if isA: a(f"s_mul_i32 s{S_T3}, s{S_IX}, 3")
        else: a(f"s_lshl_b32 s{S_T3}, s{S_IX}, 1\ns_add_u32 s{S_T3}, s{S_T3}, 6")
        a(f"s_add_u32 s{S_T2}, s{S_T2}, s{S_T3}\ns_lshl_b32 s{S_T2}, s{S_T2}, 10\ns_add_u32 s{S_T3}, s{S_T1}, s{S_T2}")
        gu_epilogue(list(range(NT)), S_T3)
    elif not isA:
        a(f"s_lshl_b32 s{S_T2}, s{S_CB}, 2\ns_lshl_b32 s{S_T3}, s{S_IX}, 1\ns_add_u32 s{S_T2}, s{S_T2}, s{S_T3}\ns_add_u32 s{S_T2}, s{S_T2}, 32")
        a(f"s_lshl_b32 s{S_T2}, s{S_T2}, 10\ns_add_u32 s{S_T3}, s{S_T1}, s{S_T2}")
        U2 = T + 6
        for m in range(2):
            for r in range(4):
                a(f"v_mul_f32 v{HACC+4*m+r}, v{HACC+4*m+r}, v{VSTH+1}")
            a(f"v_cvt_pk_bf16_f32 v{HACC+4*m}, v{HACC+4*m}, v{HACC+4*m+1}\nv_cvt_pk_bf16_f32 v{HACC+4*m+1}, v{HACC+4*m+2}, v{HACC+4*m+3}")
        a(f"v_bfe_u32 v{U2}, v1, 3, 1\nv_and_b32 v{U2+1}, 7, v1\nv_lshrrev_b32 v{U2+2}, 4, v1")
        a(f"s_lshr_b32 s{S_T0}, s{S_B}, 1\ns_lshl_b32 s{S_T0}, s{S_T0}, 3\ns_and_b32 s{S_T2}, s{S_B}, 1\ns_lshl_b32 s{S_T2}, s{S_T2}, 1\ns_add_u32 s{S_T0}, s{S_T0}, s{S_T2}")
        a(f"v_lshlrev_b32 v{U2+3}, 2, v{U2}\nv_and_b32 v{U2+4}, 1, v{U2+2}\nv_add_u32 v{U2+3}, v{U2+3}, v{U2+4}\nv_add_u32 v{U2+3}, s{S_T0}, v{U2+3}")
        a(f"v_mul_u32_u24 v{U2+3}, {KPL}, v{U2+3}\nv_lshlrev_b32 v{U2+4}, 4, v{U2+1}\nv_add_u32 v{U2+3}, v{U2+3}, v{U2+4}")
        a(f"v_lshrrev_b32 v{U2+4}, 1, v{U2+2}\nv_lshlrev_b32 v{U2+4}, 3, v{U2+4}\nv_add_u32 v{U2+3}, v{U2+3}, v{U2+4}")
        a(f"ds_write_b64 v{U2+3}, v[{HACC}:{HACC+1}] offset:{KS}")
        a(f"s_lshl_b32 s{S_T0}, s{S_T0}, 1")
        a(f"v_lshlrev_b32 v{U2+3}, 3, v{U2}\nv_add_u32 v{U2+3}, v{U2+3}, v{U2+2}\nv_add_u32 v{U2+3}, s{S_T0}, v{U2+3}")
        a(f"v_mul_u32_u24 v{U2+3}, {VPL}, v{U2+3}\nv_lshlrev_b32 v{U2+4}, 3, v{U2+1}\nv_add_u32 v{U2+3}, v{U2+3}, v{U2+4}")
        a(f"v_add_u32 v{U2+3}, {VS}, v{U2+3}")
        a(f"ds_write_b64 v{U2+3}, v[{HACC+4}:{HACC+5}]")
        gu_epilogue([0, 1], S_T3)
        a("s_waitcnt lgkmcnt(0)\ns_barrier")
    else:
        a(f"v_mul_f32 v{T}, {f32(QSCALE)}, v{VST+1}\nv_mul_f32 v{T+2}, {f32(QSCALE)}, v{VST+3}")
        for c in (1, 2, 0):
            for t in range(2):
                b = acc(c, t)
                if c == 0: sc, sel = T + 2 * t, "op_sel_hi:[1,0]"
                else: sc, sel = VST + 2 * t, "op_sel:[0,1] op_sel_hi:[1,1]"
                for r in range(0, 16, 2):
                    a(f"v_pk_mul_f32 v[{b+r}:{b+r+1}], v[{b+r}:{b+r+1}], v[{sc}:{sc+1}] {sel}")
                for i in range(8):
                    a(f"v_cvt_pk_bf16_f32 v{b+i}, v{b+2*i}, v{b+2*i+1}")
                if c < 2:
                    for i in range(4):
                        a(f"v_permlane32_swap_b32 v{b+i}, v{b+4+i}")
            if c == 1:
                a(f"v_and_b32 v{T+5}, 31, v1\nv_lshrrev_b32 v{T+6}, 5, v1")
                a(f"s_lshl_b32 s{S_T0}, s{S_RP}, 5\ns_add_u32 s{S_T0}, s{S_T0}, 8")
                a(f"v_add_u32 v{T+5}, s{S_T0}, v{T+5}")
                a(f"s_mul_i32 s{S_T0}, s{S_IX}, {8*KPL}\ns_add_u32 s{S_T0}, s{S_T0}, {KS}")
                a(f"v_mul_u32_u24 v{T+4}, {2*KPL}, v{T+6}\nv_lshlrev_b32 v{T+7}, 4, v{T+5}\nv_add_u32 v{T+4}, v{T+4}, v{T+7}\nv_add_u32 v{T+4}, s{S_T0}, v{T+4}")
                VK = T + 4
                for t in range(2):
                    for h in range(2):
                        b = acc(1, t) + 4 * h
                        a(f"ds_write_b128 v{VK}, v[{b}:{b+3}] offset:{t*4*KPL + h*KPL}")
            if c == 2:
                a(f"s_mul_i32 s{S_T2}, s{S_IX}, {16*VPL}\ns_add_u32 s{S_T2}, s{S_T2}, {VS}")
                a(f"v_mul_u32_u24 v{T+7}, {VPL}, v{T+6}\nv_lshlrev_b32 v{T+8}, 3, v{T+5}\nv_add_u32 v{T+7}, v{T+7}, v{T+8}\nv_add_u32 v{T+7}, s{S_T2}, v{T+7}")
                for t in range(2):
                    for e in range(2):
                        for i in range(2):
                            b = acc(2, t) + 4 * e + 2 * i
                            a(f"ds_write_b64 v{T+7}, v[{b}:{b+1}] offset:{t*8*VPL + e*4*VPL + 2*i*VPL}")
        a("s_waitcnt lgkmcnt(0)\ns_barrier")
        a(f"v_subrev_u32 v{VK}, 128, v{VK}")
        KD = 160
        def kd(t, d): return KD + (t * 2 + (d - 1)) * 8
        for t in range(2):
            for d in (1, 2):
                for h in range(2):
                    a(f"ds_read_b128 v[{kd(t,d)+4*h}:{kd(t,d)+4*h+3}], v{VK} offset:{t*4*KPL + h*KPL + 128 - 64*d}")
        a(f"v_lshrrev_b32 v{T+6}, 4, v1\nv_bfe_u32 v{T+7}, v1, 2, 2\nv_and_b32 v{T+8}, 3, v1")
        a(f"v_and_b32 v{T+9}, 1, v{T+6}\nv_lshlrev_b32 v{T+9}, 4, v{T+9}\nv_lshlrev_b32 v{T+8}, 2, v{T+8}")
        a(f"v_add_u32 v{T+9}, v{T+9}, v{T+8}\nv_add_u32 v{T+9}, v{T+9}, v{T+7}")
        a(f"s_lshl_b32 s{S_T3}, s{S_RP}, 5\nv_add_u32 v{T+9}, s{S_T3}, v{T+9}\nv_lshlrev_b32 v{T+9}, 3, v{T+9}")
        a(f"v_lshrrev_b32 v{T+6}, 1, v{T+6}\nv_mul_u32_u24 v{T+6}, {4*VPL}, v{T+6}\nv_add_u32 v{T+9}, v{T+9}, v{T+6}\nv_add_u32 v{T+9}, s{S_T2}, v{T+9}")
        VV = T + 9
        VT = 192
        def vt(t, d, dd): return VT + ((t * 3 + d) * 4 + dd) * 2
        a(f"s_or_b32 s{S_T2}, s{S_RB}, s{S_RP}\ns_cmp_eq_u32 s{S_T2}, 0\ns_cselect_b32 s{S_T2}, {f32(-1e9)}, 0")
        a(f"v_and_b32 v{T+10}, 31, v1\nv_mov_b32 v{T+11}, s{S_T2}")
        a(f"v_cmp_gt_u32 vcc, 4, v{T+10}\nv_cndmask_b32 v{T+12}, 0, v{T+11}, vcc")
        a(f"v_cmp_gt_u32 vcc, 8, v{T+10}\nv_cndmask_b32 v{T+13}, 0, v{T+11}, vcc")
        SB = acc(2, 0)
        def S(t, d): return SB + (t * 3 + d) * 4
        for t in range(2):
            for r in range(4):
                a(f"v_mov_b32 v{S(t,0)+r}, 0\nv_mov_b32 v{S(t,1)+r}, v{T+12}\nv_mov_b32 v{S(t,2)+r}, v{T+13}")
        a("s_waitcnt lgkmcnt(0)")
        for t in range(2):
            for d in range(3):
                for dd in range(4):
                    a(f"ds_read_b64_tr_b16 v[{vt(t,d,dd)}:{vt(t,d,dd)+1}], v{VV} offset:{t*8*VPL + dd*VPL + 64 - 32*d}")
        for ks in range(4):
            for t in range(2):
                q = acc(0, t) + 2 * ks
                for d in range(3):
                    ka = (acc(1, t) if d == 0 else kd(t, d)) + 2 * ks
                    a(f"v_mfma_f32_4x4x4_16b_bf16 v[{S(t,d)}:{S(t,d)+3}], v[{ka}:{ka+1}], v[{q}:{q+1}], v[{S(t,d)}:{S(t,d)+3}]")
        a(f"s_mov_b32 s{S_M1}, 0xeeeeeeee\ns_mov_b32 s{S_M1+1}, 0xeeeeeeee\ns_mov_b32 s{S_M2}, 0xcccccccc\ns_mov_b32 s{S_M2+1}, 0xcccccccc\ns_mov_b32 s{S_M3}, 0x88888888\ns_mov_b32 s{S_M3+1}, 0x88888888")
        a(f"v_mov_b32 v{T+14}, 0xffff\nv_mov_b32 v{T+18}, 0xffffffff")
        a(f"v_cndmask_b32 v{T+14}, v{T+14}, v{T+18}, s[{S_M1}:{S_M1+1}]")
        a(f"v_mov_b32 v{T+15}, 0\nv_mov_b32 v{T+19}, 0xffff\nv_cndmask_b32 v{T+15}, v{T+15}, v{T+19}, s[{S_M2}:{S_M2+1}]\nv_cndmask_b32 v{T+15}, v{T+15}, v{T+18}, s[{S_M3}:{S_M3+1}]")
        a(f"v_not_b32 v{T+16}, v{T+14}\nv_not_b32 v{T+17}, v{T+15}")
        for t in range(2):
            s0, s1, s2 = S(t, 0), S(t, 1), S(t, 2)
            m = acc(1, t) + 8
            for r, mk in ((1, S_M1), (2, S_M2), (3, S_M3)):
                a(f"v_cndmask_b32 v{s0+r}, v{s2+r}, v{s0+r}, s[{mk}:{mk+1}]")
            a(f"v_max3_f32 v{m}, v{s0}, v{s0+1}, v{s0+2}\nv_max3_f32 v{m+1}, v{s0+3}, v{s1}, v{s1+1}")
            a(f"v_max3_f32 v{m}, v{s1+2}, v{s1+3}, v{m}\nv_max_f32 v{m}, v{m}, v{m+1}")
            vals = [s0 + r for r in range(4)] + [s1 + r for r in range(4)]
            for v in vals: a(f"v_sub_f32 v{v}, v{v}, v{m}")
            for v in vals: a(f"v_exp_f32 v{v}, v{v}")
            a(f"v_add_f32 v{m}, v{s0}, v{s0+1}\nv_add_f32 v{m+1}, v{s0+2}, v{s0+3}\nv_add_f32 v{m+2}, v{s1}, v{s1+1}\nv_add_f32 v{m+3}, v{s1+2}, v{s1+3}")
            a(f"v_add_f32 v{m}, v{m}, v{m+1}\nv_add_f32 v{m+2}, v{m+2}, v{m+3}\nv_add_f32 v{m}, v{m}, v{m+2}")
            a(f"v_rcp_f32 v{m}, v{m}")
            for v in vals: a(f"v_mul_f32 v{v}, v{v}, v{m}")
            pb = acc(0, t) + 8
            a(f"v_cvt_pk_bf16_f32 v{pb+6}, v{s0}, v{s0+1}\nv_cvt_pk_bf16_f32 v{pb+7}, v{s0+2}, v{s0+3}")
            a(f"v_cvt_pk_bf16_f32 v{pb+2}, v{s1}, v{s1+1}\nv_cvt_pk_bf16_f32 v{pb+3}, v{s1+2}, v{s1+3}")
            a(f"v_and_b32 v{pb}, v{pb+6}, v{T+14}\nv_and_b32 v{pb+1}, v{pb+7}, v{T+15}")
            a(f"v_and_b32 v{pb+4}, v{pb+6}, v{T+16}\nv_and_b32 v{pb+5}, v{pb+7}, v{T+17}")
        a("s_waitcnt lgkmcnt(0)")
        def O(t, dd): return KD + (t * 4 + dd) * 4
        for d in range(3):
            for t in range(2):
                pb = acc(0, t) + 8 + 2 * d
                for dd in range(4):
                    cin = "0" if d == 0 else f"v[{O(t,dd)}:{O(t,dd)+3}]"
                    a(f"v_mfma_f32_4x4x4_16b_bf16 v[{O(t,dd)}:{O(t,dd)+3}], v[{vt(t,d,dd)}:{vt(t,d,dd)+1}], v[{pb}:{pb+1}], {cin}")
        a(f"v_and_b32 v{T}, 31, v1\nv_lshlrev_b32 v{T}, 4, v{T}\nv_lshrrev_b32 v{T+1}, 5, v1\nv_lshlrev_b32 v{T+1}, 10, v{T+1}\nv_add_u32 v{T}, v{T}, v{T+1}")
        a(f"s_lshl_b32 s{S_T2}, s{S_CB}, 2\ns_lshl_b32 s{S_T3}, s{S_IX}, 1\ns_add_u32 s{S_T2}, s{S_T2}, s{S_T3}\ns_lshl_b32 s{S_T2}, s{S_T2}, 10\ns_add_u32 s{S_T3}, s{S_T1}, s{S_T2}")
        for t in range(2):
            ob = acc(2, t)
            for k, dd in enumerate((0, 2, 1, 3)):
                a(f"v_cvt_pk_bf16_f32 v{ob+2*k}, v{O(t,dd)}, v{O(t,dd)+1}\nv_cvt_pk_bf16_f32 v{ob+2*k+1}, v{O(t,dd)+2}, v{O(t,dd)+3}")
            a(f"s_add_u32 s{S_T0}, s{S_T3}, {t*ACT_T}")
            a(f"buffer_store_dwordx4 v[{ob}:{ob+3}], v{T}, s[{S_WS}:{S_WS+3}], s{S_T0} offen sc1"); vq.push('H')
            a(f"buffer_store_dwordx4 v[{ob+4}:{ob+7}], v{T}, s[{S_WS}:{S_WS+3}], s{S_T0} offen offset:512 sc1"); vq.push('H')
    stamp(a, 5)

    A2 = 16
    def ac2(rt, c): return A2 + (rt * 2 + c) * 16
    WR = 80
    def wreg(i, c): return WR + i * 8 + c * 4
    WF = 168
    def wf(pp, c): return WF + pp * 8 + c * 4
    AR = 184
    def act(n): return AR + (n % 18) * 4
    VR0, VACT, VOUT, VRES, VRA, VRB = 2, 3, 4, 8, 6, 7
    T = 16
    a(f"v_lshrrev_b32 v{T}, 4, v1\nv_bfe_u32 v{T+1}, v1, 2, 2\nv_and_b32 v{T+2}, 3, v1")
    a(f"v_lshrrev_b32 v5, 1, v{T}\nv_lshlrev_b32 v5, 3, v5\nv_add_u32 v5, v5, v{T+1}\nv_lshlrev_b32 v5, 7, v5")
    a(f"v_lshrrev_b32 v{T+1}, 1, v{T+1}\nv_lshlrev_b32 v{T+1}, 6, v{T+1}\nv_add_u32 v5, v5, v{T+1}")
    a(f"v_and_b32 v{T}, 1, v{T}\nv_lshlrev_b32 v{T}, 5, v{T}\nv_add_u32 v5, v5, v{T}\nv_lshlrev_b32 v{T+2}, 3, v{T+2}\nv_add_u32 v5, v5, v{T+2}")
    a(f"v_add_u32 v{VR0}, s{S_W2D}, v5")
    a(f"v_lshlrev_b32 v{VACT}, 4, v1")

    def w2_reads(blk, dsts):
        L = [f"v_add_u32 v{VRA}, {BLK[blk]}, v{VR0}", f"v_xor_b32 v{VRB}, 64, v{VRA}"]
        for c in range(2):
            for h in range(2):
                L.append(f"ds_read_b64_tr_b16 v[{dsts[c]+2*h}:{dsts[c]+2*h+1}], v{VRA if c == 0 else VRB} offset:{h*512}")
        return L
    blk_of = {i: i for i in range(7)}
    n = vq.n_after([('D', i) for i in range(7)])
    a(f"s_waitcnt vmcnt({n})"); vq.done(n)
    for i in range(7):
        for s_ in w2_reads(i, [wreg(i, 0), wreg(i, 1)]): a(s_)
    a("s_waitcnt lgkmcnt(0)")
    for i in range(7, 14):
        blk_of[i] = i - 7
        emit_groups(w2_dma(i, i - 7))
    n = vq.n_after(['H', 'SS'])
    a(f"s_waitcnt vmcnt({n})"); vq.done(n)
    stamp(a, 6)
    cnt_addr = CNT_O if (att and isA) else CNT_H
    cnt_n = 8 if not att else 4
    lab = a.newlabel(P + "_nosig")
    a(f"v_mov_b32 v{T}, {cnt_addr}\nv_mov_b32 v{T+1}, 1")
    a("s_mov_b64 exec, 1")
    a(f"ds_add_rtn_u32 v{T+2}, v{T}, v{T+1}\ns_waitcnt lgkmcnt(0)\nv_readfirstlane_b32 s{S_T0}, v{T+2}")
    a(f"s_cmp_lg_u32 s{S_T0}, {cnt_n-1}\ns_cbranch_scc1 {lab}")
    if att and isA:
        a(f"s_lshl_b32 s{S_T0}, s{S_CB}, 2\ns_add_u32 s{S_T0}, s{S_T0}, 64")
    else:
        a(f"s_lshl_b32 s{S_T0}, s{S_K16}, 2")
    a(f"s_lshl_b32 s{S_T1}, s{S_RB}, 7\ns_add_u32 s{S_T0}, s{S_T0}, s{S_T1}\ns_add_u32 s{S_T0}, s{S_T0}, 0x{FLAG_OFF:x}")
    a(f"v_mov_b32 v{T}, s{S_TAG}")
    a(f"buffer_store_dword v{T}, off, s[{S_WS}:{S_WS+3}], s{S_T0} sc1")
    a.label(lab)
    a("s_mov_b64 exec, -1")
    n = vq.n_after([('D', i) for i in range(7, 11)])
    a(f"s_waitcnt vmcnt({n})"); vq.done(n)
    for i in range(7, 11):
        for s_ in w2_reads(blk_of[i], [wreg(i, 0), wreg(i, 1)]): a(s_)
    a("s_waitcnt lgkmcnt(0)")
    for i in range(14, 18):
        blk_of[i] = blk_of[i - 7]
        emit_groups(w2_dma(i, blk_of[i]))
    a(f"v_and_b32 v{T}, 31, v1\nv_lshlrev_b32 v{T}, 11, v{T}\nv_lshrrev_b32 v{T+1}, 5, v1\nv_lshlrev_b32 v{T+1}, 4, v{T+1}\nv_add_u32 v{VOUT}, v{T}, v{T+1}")
    a(f"s_lshl_b32 s{S_OUTO}, s{S_RPP}, 16\ns_and_b32 s{S_T0}, s{S_WAVE}, 1\ns_lshl_b32 s{S_T0}, s{S_T0}, 10\ns_add_u32 s{S_OUTO}, s{S_OUTO}, s{S_T0}")
    a(f"s_lshl_b32 s{S_T0}, s{S_CT}, 7\ns_add_u32 s{S_OUTO}, s{S_OUTO}, s{S_T0}\ns_lshr_b32 s{S_T0}, s{S_WAVE}, 1\ns_lshl_b32 s{S_T0}, s{S_T0}, 5\ns_add_u32 s{S_OUTO}, s{S_OUTO}, s{S_T0}")
    a(f"buffer_load_dwordx4 v[{VRES}:{VRES+3}], v{VOUT}, s[{S_X}:{S_X+3}], s{S_OUTO} offen"); vq.push('RES')
    if isA:
        l_sp, l_go = a.newlabel(P + "_spin"), a.newlabel(P + "_go")
        a(f"s_cmp_lg_u32 s{S_WAVE}, 0\ns_cbranch_scc1 {l_sp}")
        poll_flags(a, 24, RDY_O, P, T)
        a(f"s_cmp_lg_u32 s{S_K16}, 0\ns_cbranch_scc1 {l_go}")
        a(f"s_lshl_b32 s{S_T0}, s{S_RB}, 7\ns_add_u32 s{S_T0}, s{S_T0}, 0x{EP_OFF:x}\nv_mov_b32 v{T}, s{S_TAG}")
        a("s_mov_b64 exec, 1")
        a(f"buffer_store_dword v{T}, off, s[{S_WS}:{S_WS+3}], s{S_T0} sc1")
        a("s_mov_b64 exec, -1")
        a(f"s_branch {l_go}")
        a.label(l_sp)
        spin_lds(a, RDY_O, P, T)
        a.label(l_go)
    else:
        l_sp, l_go = a.newlabel(P + "_spin"), a.newlabel(P + "_go")
        a(f"s_cmp_lg_u32 s{S_WAVE}, 4\ns_cbranch_scc1 {l_sp}")
        poll_flags(a, 16, RDY_H, P, T)
        a(f"s_branch {l_go}")
        a.label(l_sp)
        spin_lds(a, RDY_H, P, T)
        a.label(l_go)
    stamp(a, 7)
    def chunk_of(i):
        if isA: return (32 + 4 * i) if i < 10 else 4 * (i - 10)
        return 72 + 4 * i
    def actload(n):
        i, rt = n >> 1, n & 1
        a(f"s_add_u32 s{S_T0}, s{S_ACTB}, {chunk_of(i)*1024 + rt*ACT_T}")
        a(f"buffer_load_dwordx4 v[{act(n)}:{act(n)+3}], v{VACT}, s[{S_WS}:{S_WS+3}], s{S_T0} offen sc1")
        vq.push(('A', n))
    for n_ in range(18): actload(n_)
    for i in range(18):
        if i < 11: wsrc = [wreg(i, 0), wreg(i, 1)]
        else: wsrc = [wf(i & 1, 0), wf(i & 1, 1)]
        for rt in range(2):
            n_ = 2 * i + rt
            n = vq.n_after([('A', n_)])
            w = f"s_waitcnt vmcnt({n})"; vq.done(n)
            if rt == 0 and i >= 11: w += " lgkmcnt(0)"
            a(w)
            if rt == 0 and 11 <= i + 1 < 18:
                for s_ in w2_reads(blk_of[i + 1], [wf((i + 1) & 1, 0), wf((i + 1) & 1, 1)]): a(s_)
            for c in range(2):
                cin = "0" if i == 0 else f"v[{ac2(rt,c)}:{ac2(rt,c)+15}]"
                a(f"v_mfma_f32_32x32x16_bf16 v[{ac2(rt,c)}:{ac2(rt,c)+15}], v[{wsrc[c]}:{wsrc[c]+3}], v[{act(n_)}:{act(n_)+3}], {cin}")
            if n_ + 18 < 36: actload(n_ + 18)
    stamp(a, 8)
    T = 12
    a("s_barrier")
    a(f"v_and_b32 v{T}, 31, v1\nv_mul_u32_u24 v{T}, {PSTR}, v{T}\nv_lshrrev_b32 v{T+1}, 5, v1\nv_lshlrev_b32 v{T+1}, 7, v{T+1}\nv_add_u32 v{T}, v{T}, v{T+1}")
    a(f"s_mul_i32 s{S_T0}, s{S_WAVE}, {PWAVE}\nv_add_u32 v{T+2}, s{S_T0}, v{T}")
    for rt in range(2):
        for c in range(2):
            for q in range(4):
                b = ac2(rt, c) + 4 * q
                a(f"ds_write_b128 v{T+2}, v[{b}:{b+3}] offset:{rt*32*PSTR + (4*c+q)*16}")
    a(f"v_and_b32 v{T}, 31, v1\nv_mul_u32_u24 v{T}, {PSTR}, v{T}\nv_lshrrev_b32 v{T+1}, 5, v1\nv_lshlrev_b32 v{T+1}, 4, v{T+1}\nv_add_u32 v{T}, v{T}, v{T+1}")
    a(f"s_and_b32 s{S_T0}, s{S_WAVE}, 1\ns_mul_i32 s{S_T0}, s{S_T0}, {32*PSTR}\ns_lshr_b32 s{S_T1}, s{S_WAVE}, 1\ns_lshl_b32 s{S_T1}, s{S_T1}, 5\ns_add_u32 s{S_T0}, s{S_T0}, s{S_T1}")
    a(f"v_add_u32 v{T}, s{S_T0}, v{T}")
    a(f"v_add_u32 v{T+1}, {4*PWAVE}, v{T}")
    a("s_waitcnt lgkmcnt(0)\ns_barrier")
    for pp in range(8):
        va = T if pp < 4 else T + 1
        for h in range(2):
            a(f"ds_read_b128 v[{80+pp*8+h*4}:{80+pp*8+h*4+3}], v{va} offset:{(pp%4)*PWAVE + h*128}")
    for i in range(4):
        a(f"v_lshlrev_b32 v{16+2*i}, 16, v{VRES+i}\nv_and_b32 v{17+2*i}, 0xffff0000, v{VRES+i}")
    for pp in range(8):
        a(f"s_waitcnt lgkmcnt({14-2*pp})")
        for k in range(0, 8, 2):
            a(f"v_pk_add_f32 v[{16+k}:{17+k}], v[{16+k}:{17+k}], v[{80+pp*8+k}:{80+pp*8+k+1}]")
    for i in range(4):
        a(f"v_cvt_pk_bf16_f32 v{24+i}, v{16+2*i}, v{17+2*i}")
    a(f"buffer_store_dwordx4 v[24:27], v{VOUT}, s[{S_OUT}:{S_OUT+3}], s{S_OUTO} offen")
    stamp(a, 9)
    if PROF:
        a("s_waitcnt vmcnt(0)")
        stamp(a, 10, True)
        a("s_waitcnt lgkmcnt(0)")
        for k in range(11):
            a(f"v_writelane_b32 v2, s{80+2*k}, {k}")
        a(f"v_lshlrev_b32 v3, 2, v1")
        a(f"s_lshl_b32 s{S_T0}, s2, 3\ns_add_u32 s{S_T0}, s{S_T0}, s{S_WAVE}\ns_lshl_b32 s{S_T0}, s{S_T0}, 6\ns_add_u32 s{S_T0}, s{S_T0}, 0x{PROF_OFF:x}")
        a("s_mov_b64 exec, 0xffff")
        a(f"buffer_store_dword v2, v3, s[{S_WS}:{S_WS+3}], s{S_T0} offen")
    a("s_endpgm")
    a.label(L_RETRY)
    a(f"s_mov_b32 s{S_T3}, 0")
    l_r = a.newlabel(P + "_rl")
    a.label(l_r)
    sv = vq.q
    vq.q = []
    emit_groups(rec_loads())
    vq.q = sv
    a("s_waitcnt vmcnt(0)")
    a(f"s_add_u32 s{S_T3}, s{S_T3}, 1\ns_cmp_gt_u32 s{S_T3}, {SPIN_G}\ns_cbranch_scc1 {L_OK}")
    rec_check(a.newlabel(P + "_rok"), l_r)
    a(f"s_branch {L_OK}")


def gen_kernel():
    a = Asm()
    a.raw(f".globl {KNAME}\n.p2align 8\n.type {KNAME},@function\n{KNAME}:")
    a("s_cmp_ge_u32 s2, 256\ns_cbranch_scc1 K_END")
    a("s_load_dwordx2 s[4:5], s[0:1], 0\ns_load_dwordx2 s[6:7], s[0:1], 8\ns_load_dwordx2 s[8:9], s[0:1], 32\n"
      "s_load_dwordx2 s[10:11], s[0:1], 40\ns_load_dwordx2 s[12:13], s[0:1], 72\ns_load_dwordx2 s[14:15], s[0:1], 16\n"
      f"s_load_dwordx2 s[{S_WD+4}:{S_WD+5}], s[0:1], 48\ns_load_dwordx2 s[{S_OUT+2}:{S_OUT+3}], s[0:1], 56")
    a("v_and_b32 v1, 63, v0\nv_lshrrev_b32 v2, 6, v0")
    a(f"v_readfirstlane_b32 s{S_WAVE}, v2")
    a(f"s_and_b32 s3, s2, 7\ns_lshr_b32 s{S_T0}, s2, 3")
    a(f"s_and_b32 s{S_RB}, s3, 1\ns_lshl_b32 s{S_RB}, s{S_RB}, 3\ns_and_b32 s{S_T1}, s{S_T0}, 7\ns_add_u32 s{S_RB}, s{S_RB}, s{S_T1}")
    a(f"s_lshr_b32 s{S_SEL}, s{S_T0}, 3")
    a(f"s_lshr_b32 s3, s3, 1\ns_lshl_b32 s3, s3, 1\ns_and_b32 s{S_T1}, s{S_SEL}, 1\ns_add_u32 s{S_CB}, s3, s{S_T1}")
    a(f"s_lshr_b32 s{S_T2}, s{S_SEL}, 1")
    a(f"s_lshl_b32 s{S_K16}, s{S_T2}, 3\ns_add_u32 s{S_K16}, s{S_K16}, s{S_CB}")
    a(f"s_and_b32 s{S_B}, s{S_WAVE}, 3\ns_lshr_b32 s{S_RP}, s{S_B}, 1\ns_and_b32 s{S_IX}, s{S_B}, 1")
    a(f"s_cmp_lt_u32 s{S_WAVE}, 4\ns_cselect_b32 s{S_T3}, 0, 1\ns_lshl_b32 s{S_T2}, s{S_T2}, 1\ns_add_u32 s{S_T2}, s{S_T2}, s{S_T3}")
    a(f"s_cmp_eq_u32 s{S_T2}, 1\ns_cbranch_scc1 RattB")
    a(f"s_cmp_eq_u32 s{S_T2}, 2\ns_cbranch_scc1 RffnA")
    a(f"s_cmp_eq_u32 s{S_T2}, 3\ns_cbranch_scc1 RffnB")
    gen_role(a, 'att', 'A')
    gen_role(a, 'att', 'B')
    gen_role(a, 'ffn', 'A')
    gen_role(a, 'ffn', 'B')
    a.label("K_END")
    a("s_endpgm")
    a.finalize()
    return a

def build(path):
    hdr = open("cdna_kernels/" + NAME + ".s.ref").read().split("\n")
    comments = [l for l in hdr if l.startswith(";") and "@launch" not in l and "Override launch" not in l and "grid=ceil" not in l]
    k = gen_kernel()
    out = "\n".join(comments) + "\n"
    out += f"; @launch grid=(256,1,1) block=(512,1,1) lds={LDS_SIZE}\n"
    out += '.amdgcn_target "amdgcn-amd-amdhsa--gfx950"\n.text\n'
    out += k.text()
    out += ('.section .rodata,"a"\n.p2align 6\n'
            f".amdhsa_kernel {KNAME}\n  .amdhsa_next_free_vgpr 256\n  .amdhsa_next_free_sgpr 102\n"
            "  .amdhsa_accum_offset 256\n  .amdhsa_group_segment_fixed_size 0\n  .amdhsa_kernarg_size 80\n"
            "  .amdhsa_user_sgpr_count 2\n  .amdhsa_user_sgpr_kernarg_segment_ptr 1\n"
            "  .amdhsa_system_sgpr_workgroup_id_x 1\n.end_amdhsa_kernel\n")
    open(path, "w").write(out)
    print("instr count", k.count(), "pads", getattr(k, 'npad', 0), "bytes", len(out))

if __name__ == "__main__":
    if len(sys.argv) > 2 and sys.argv[2] == "prof": PROF = True
    if len(sys.argv) > 2 and sys.argv[2] == "prof2": PROF = True; PROF2 = True
    build(sys.argv[1] if len(sys.argv) > 1 else "v2.s")
```
